```python
import torch

def _softmax(x, axis=-1):
    return torch.softmax(x, dim=axis)
def _gelu(x):
    return torch.nn.functional.gelu(x, approximate="tanh")
def _silu(x):
    return torch.nn.functional.silu(x)
def _sigmoid(x):
    return torch.sigmoid(x)
def _layernorm(x, axis=-1, eps=1e-5):
    m = x.mean(dim=axis, keepdim=True)
    v = x.var(dim=axis, keepdim=True, unbiased=False)
    return (x - m) / torch.sqrt(v + eps)
def _scatter_add(tgt, idx, src, axis=0):
    return tgt.clone().index_add_(axis, idx, src)
def _segment_sum(src, seg, n):
    out = torch.zeros((n,) + src.shape[1:], dtype=src.dtype)
    return out.index_add_(0, seg, src)
def _pad(x, pw):
    flat = tuple(v for pair in reversed(pw) for v in pair)
    return torch.nn.functional.pad(x, flat)

kernel_name = 'recurrent_scan__spectral_fnet__mixer_s_mlp__prompt'

def setup_inputs():

    _w = (lambda a: (lambda t: t.to(torch.bfloat16) if t.is_floating_point() else t)(torch.as_tensor(a)))
    def _A_setup():
        B, S, D = 1, 2048, 512
        ns = torch.arange(S)[:, None] * torch.arange(S)[None, :]
        nd = torch.arange(D)[:, None] * torch.arange(D)[None, :]
        Ws_re = torch.cos(-2.0 * torch.pi * ns / S).to(float)
        Ws_im = torch.sin(-2.0 * torch.pi * ns / S).to(float)
        Wd_re = torch.cos(-2.0 * torch.pi * nd / D).to(float)
        Wd_im = torch.sin(-2.0 * torch.pi * nd / D).to(float)
        return {
            "x": _w((lambda *s: torch.randn(*s, dtype=torch.bfloat16) * 0.05)(B, S, D)),
            "dft_seq_re": _w(Ws_re),
            "dft_seq_im": _w(Ws_im),
            "dft_hid_re": _w(Wd_re),
            "dft_hid_im": _w(Wd_im),
        }
    _A_in = _A_setup()

    def _B_setup():
        B, S, D, F = 1, 2048, 512, 1376
        return {
            "x":  _w((lambda *s: torch.randn(*s, dtype=torch.bfloat16) * 0.05)(B, S, D)),
            "w1": _w((lambda *s: torch.randn(*s, dtype=torch.bfloat16) * 3.2)(D, D) * (D ** -0.5)),
            "w2": _w((lambda *s: torch.randn(*s, dtype=torch.bfloat16) * 3.2)(D, D) * (D ** -0.5)),
            "w3": _w((lambda *s: torch.randn(*s, dtype=torch.bfloat16) * 3.2)(D, F) * (D ** -0.5)),
            "w4": _w((lambda *s: torch.randn(*s, dtype=torch.bfloat16) * 3.2)(F, D) * (F ** -0.5)),
        }
    _B_in = _B_setup()

    return {
        "A_x": _A_in["x"],
        "A_dft_seq_re": _A_in["dft_seq_re"],
        "A_dft_seq_im": _A_in["dft_seq_im"],
        "A_dft_hid_re": _A_in["dft_hid_re"],
        "A_dft_hid_im": _A_in["dft_hid_im"],
        "B_x": _B_in["x"],
        "B_w1": _B_in["w1"],
        "B_w2": _B_in["w2"],
        "B_w3": _B_in["w3"],
        "B_w4": _B_in["w4"],
    }

def reference(A_x, A_dft_seq_re, A_dft_seq_im, A_dft_hid_re, A_dft_hid_im, B_x, B_w1, B_w2, B_w3, B_w4):
    def _A_ref(x, dft_seq_re, dft_seq_im, dft_hid_re, dft_hid_im):
        a = torch.einsum("bsd,ed->bse", x, dft_hid_re)
        b = torch.einsum("bsd,ed->bse", x, dft_hid_im)
        y = torch.einsum("ts,bse->bte", dft_seq_re, a) - torch.einsum("ts,bse->bte", dft_seq_im, b)
        return y

    def _B_ref(x, w1, w2, w3, w4):
        B, S, D = x.shape
        h = _gelu(_layernorm(x, axis=-1) @ w1)
        c = D // 4
        g0 = _pad(h[:, :, 0*c:1*c], ((0, 0), (1, 0), (0, 0)))[:, :S, :]
        g1 = _pad(h[:, :, 1*c:2*c], ((0, 0), (0, 1), (0, 0)))[:, 1:, :]
        g2 = _pad(h[:, :, 2*c:3*c], ((0, 0), (2, 0), (0, 0)))[:, :S, :]
        g3 = _pad(h[:, :, 3*c:   ], ((0, 0), (0, 2), (0, 0)))[:, 2:, :]
        hs = torch.concatenate([g0, g1, g2, g3], axis=-1) @ w2
        x1 = x + hs
        h2 = _gelu(_layernorm(x1, axis=-1) @ w3) @ w4
        return x1 + h2

    x = A_x
    xn = _layernorm(x, axis=-1)
    s = _A_ref(xn, A_dft_seq_re, A_dft_seq_im, A_dft_hid_re, A_dft_hid_im)
    g = _silu(_B_ref(xn, B_w1, B_w2, B_w3, B_w4))
    return x + s * g
```

```python
import re

TRANS = ("v_exp_f32", "v_log_f32", "v_rcp_f32", "v_rsq_f32", "v_sqrt_f32", "v_sin_f32", "v_cos_f32")

def regs_of(tok):
    tok = tok.strip()
    tok = tok.lstrip("-")
    m = re.fullmatch(r"abs\((.*)\)", tok)
    if m: tok = m.group(1)
    m = re.fullmatch(r"([vs])(\d+)", tok)
    if m: return [tok]
    m = re.fullmatch(r"([vs])\[(\d+):(\d+)\]", tok)
    if m: return [m.group(1) + str(i) for i in range(int(m.group(2)), int(m.group(3)) + 1)]
    if tok in ("vcc", "exec", "m0"): return [tok]
    if tok in ("vcc_lo", "vcc_hi"): return ["vcc"]
    if tok in ("exec_lo", "exec_hi"): return ["exec"]
    return []

class Ins:
    def __init__(self, text, opt=0):
        self.text = text; self.opt = opt
        t = text.split(";")[0].strip()
        self.is_label = t.endswith(":")
        self.is_ins = bool(t) and not self.is_label and not t.startswith(".")
        self.w = set(); self.r = set(); self.cls = None; self.op = None; self.states = 0
        self.srcC = set(); self.srcAB = set(); self.passes = 0; self.dpp = False; self.sdata = set()
        if not self.is_ins: return
        parts = t.split(None, 1)
        op = parts[0]; self.op = op
        rest = parts[1] if len(parts) > 1 else ""
        ops = []; cur = ""; depth = 0
        for ch in rest:
            if ch in "[(": depth += 1
            if ch in "])": depth -= 1
            if ch == "," and depth == 0: ops.append(cur.strip()); cur = ""
            else: cur += ch
        if cur.strip(): ops.append(cur.strip())
        mods = ""
        if ops:
            last = ops[-1].split(None, 1)
            ops[-1] = last[0]
            mods = last[1] if len(last) > 1 else ""
        self.mods = mods
        R = [regs_of(o) for o in ops]
        self.states = 1
        flat = lambda L: set(x for y in L for x in y)
        if op == "s_nop":
            self.cls = "nop"; self.states = int(ops[0], 0) + 1
        elif op.startswith("v_mfma"):
            self.cls = "mfma"; self.passes = 8 if "32x32" in op else 4
            self.w = set(R[0]); self.srcAB = set(R[1]) | set(R[2]); self.srcC = set(R[3]); self.r = self.srcAB | self.srcC
        elif op.startswith("v_"):
            self.cls = "valu"
            base = op.replace("_e32", "").replace("_e64", "").replace("_dpp", "")
            self.base = base
            self.dpp = "row_" in mods or "quad_perm" in mods or op.endswith("_dpp")
            if base.startswith("v_permlane") and "swap" in base:
                self.w = flat(R); self.r = flat(R)
            elif base.startswith("v_cmp"):
                self.w = set(R[0]); self.r = flat(R[1:])
            elif base in ("v_add_co_u32", "v_sub_co_u32"):
                self.w = set(R[0]) | set(R[1]); self.r = flat(R[2:])
            else:
                self.w = set(R[0]); self.r = flat(R[1:])
                if base.startswith("v_dot2c") or base.startswith("v_fmac") or self.dpp: self.r |= set(R[0])
                if base == "v_cndmask_b32" and len(ops) == 3: self.r.add("vcc")
                if base == "v_writelane_b32": self.r |= set(R[0])
        elif op.startswith("ds_"):
            self.cls = "ds"
            if op.startswith("ds_read") or op.startswith("ds_bpermute") or op.startswith("ds_swizzle"):
                self.w = set(R[0]); self.r = flat(R[1:])
            else: self.r = flat(R)
        elif op.startswith("buffer_") or op.startswith("global_"):
            self.cls = "vmem"
            if "_load" in op and not (" lds" in " " + mods):
                self.w = set(R[0]); self.r = flat(R[1:])
            elif "_load" in op:
                self.r = flat(R) | {"m0"}; self.lds_dma = True
            else:
                self.r = flat(R)
                if "store" in op and ("x4" in op or "x3" in op):
                    self.sdata = set(R[0]) if op.startswith("buffer_") else set(R[1])
        elif op.startswith("s_"):
            self.cls = "salu"
            if op.startswith("s_cmp") or op.startswith("s_bitcmp") or op.startswith("s_cbranch") or op in ("s_branch", "s_barrier", "s_waitcnt", "s_endpgm", "s_setprio", "s_sleep"):
                self.r = flat(R)
            else:
                self.w = set(R[0]) if R else set(); self.r = flat(R[1:])
                if "saveexec" in op: self.w.add("exec")
        else:
            raise ValueError("unknown instruction " + text)

def need(p, c):
    n = 0
    isv = lambda S: {x for x in S if x.startswith("v") and x != "vcc"}
    iss = lambda S: {x for x in S if x.startswith("s") or x == "vcc"}
    if p.cls == "valu":
        vw = isv(p.w); sw = iss(p.w)
        if c.cls == "mfma" and vw & c.r: n = max(n, 2)
        if c.cls == "valu":
            if c.dpp and vw & c.r: n = max(n, 2)
            if c.base.startswith("v_permlane") and vw & c.r: n = max(n, 2)
            if c.base in ("v_readfirstlane_b32", "v_readlane_b32") and vw & c.r: n = max(n, 1)
            if p.base in TRANS and c.base not in TRANS and vw & c.r: n = max(n, 1)
            if p.base in TRANS and c.base in TRANS and vw & c.r: n = max(n, 1)
            if sw & c.r: n = max(n, 4 if c.base in ("v_readlane_b32", "v_writelane_b32") else 2)
            if p.base.startswith("v_dot2"):
                if c.base != p.base and vw & (c.r | c.w): n = max(n, 3)
                if c.base == p.base and vw & (c.r - c.w): n = max(n, 3)
        if p.base.startswith("v_dot2") and c.cls in ("ds", "vmem", "mfma") and vw & (c.r | c.w): n = max(n, 3)
        if p.base in TRANS and c.cls in ("ds", "vmem") and vw & c.r: n = max(n, 1)
        if c.cls == "vmem" and sw & c.r: n = max(n, 5)
        if c.cls == "salu" and sw & c.r: n = max(n, 1)
        if "exec" in p.w and c.cls == "mfma": n = max(n, 4)
    if p.cls == "mfma":
        big = 12 if p.passes == 8 else 8
        if c.cls == "mfma":
            if p.w & c.srcAB: n = max(n, big)
            if p.w & c.srcC:
                if not (p.w == c.srcC and p.passes == c.passes): n = max(n, 10 if p.passes == 8 else 6)
            if p.w & c.w and not (p.w == c.srcC): n = max(n, big)
        elif c.cls in ("valu", "ds", "vmem"):
            if p.w & (c.r | c.w): n = max(n, big)
            if c.cls == "valu" and p.srcC & c.w: n = max(n, 7 if p.passes == 8 else 3)
    if p.cls == "vmem" and p.sdata and c.cls in ("valu", "mfma", "ds", "vmem") and p.sdata & c.w: n = max(n, 2)
    if p.cls == "salu" and "m0" in p.w and c.cls == "vmem" and "m0" in c.r: n = max(n, 1)
    if p.cls == "salu" and "exec" in p.w and c.cls == "valu" and c.dpp: n = max(n, 1)
    return n

def pad_hazards(prefix, body):
    out = list(prefix); start = len(out); added = 0
    for ins in body:
        if ins.is_ins and ins.cls != "nop":
            req = 0; dist = 0
            for p in reversed(out):
                if dist >= 24: break
                if not p.is_ins: continue
                k = need(p, ins)
                if k > dist: req = max(req, k - dist)
                if p.opt == 0 or p.opt == ins.opt: dist += p.states
            if req > 0:
                out.append(Ins("s_nop %d" % (req - 1), ins.opt)); added += req
        out.append(ins)
    return out[start:], added

class Cnt:
    def __init__(self, name, maxv): self.name = name; self.maxv = maxv; self.q = []
    def issue(self, tag, optional=False): self.q.append((tag, optional))
    def n_for(self, tags):
        idx = max([i for i, (t, _) in enumerate(self.q) if t in tags], default=None)
        if idx is None: return None, []
        n = sum(1 for (t, o) in self.q[idx + 1:] if not o)
        done = [t for t, _ in self.q[:idx + 1]]
        self.q = self.q[idx + 1:]
        return min(n, self.maxv), done

class Prog:
    def __init__(self, name, lds):
        self.name = name; self.ins = []; self.opt = 0; self.nopt = 0
        self.vm = Cnt("vmcnt", 63); self.lg = Cnt("lgkmcnt", 15)
        self.bars = []; self.lds = lds
        self.vfree = [True] * 256; self.vmax = 0
    def __call__(self, text):
        for line in text.split("\n"):
            if line.strip(): self.ins.append(Ins("  " + line.strip() if not line.strip().endswith(":") else line.strip(), self.opt))
    def begin_opt(self): self.nopt += 1; self.opt = self.nopt
    def end_opt(self): self.opt = 0
    @property
    def epoch(self): return len(self.bars)
    def barrier(self, name):
        self("s_barrier ; %s" % name); self.bars.append(name)
    def valloc(self, n, align=1):
        if n >= 2 and align == 1: align = 2
        for b in range(0, 257 - n, align):
            if all(self.vfree[b:b + n]):
                for i in range(b, b + n): self.vfree[i] = False
                self.vmax = max(self.vmax, b + n)
                return b
        raise RuntimeError("out of VGPRs in %s (need %d)" % (self.name, n))
    def vfree_(self, b, n=1):
        for i in range(b, b + n):
            assert not self.vfree[i], "double free v%d" % i
            self.vfree[i] = True
    def wait_vm(self, *tags):
        n, done = self.vm.n_for(tags)
        if n is not None:
            self("s_waitcnt vmcnt(%d)" % n)
            for t in done: self.lds.landed(t, self)
    def wait_lg(self, *tags):
        n, done = self.lg.n_for(tags)
        if n is not None:
            self("s_waitcnt lgkmcnt(%d)" % n)
            for t in done: self.lds.access_done(t, self)
    def wait_lg_all(self):
        done = [t for t, _ in self.lg.q]; self.lg.q = []
        self("s_waitcnt lgkmcnt(0)")
        for t in done: self.lds.access_done(t, self)
    def wait_vm_all(self):
        done = [t for t, _ in self.vm.q]; self.vm.q = []
        self("s_waitcnt vmcnt(0)")
        for t in done: self.lds.landed(t, self)
    def ds(self, text, tag, item=None, write=False):
        self(text); self.lg.issue(tag)
        if item is not None: self.lds.access(item, tag, self, write)
    def vmem(self, text, tag, optional=False):
        self(text); self.vm.issue(tag, optional)

class Lds:
    def __init__(self, size):
        self.size = size; self.items = {}; self.order = []
    def item(self, name, addr, size, private=False):
        assert name not in self.items, name
        assert 0 <= addr and addr + size <= self.size, (name, addr, size)
        self.items[name] = dict(name=name, addr=addr, size=size, first=None, land=None, acc=[], private=private, certified=None)
        return name
    def addr(self, name): return self.items[name]["addr"]
    def dma(self, name, prog):
        it = self.items[name]
        if it["first"] is None: it["first"] = prog.epoch
        it["land"] = None
    def landed(self, tag, prog):
        if tag in self.items: self.items[tag]["land"] = prog.epoch + 1
    def access(self, name, tag, prog, write):
        self.items[name]["acc"].append(dict(tag=tag, prog=prog.name, start=prog.epoch, end=None, write=write))
    def access_done(self, tag, prog):
        for it in self.items.values():
            for a in it["acc"]:
                if a["tag"] == tag and a["prog"] == prog.name and a["end"] is None: a["end"] = prog.epoch
    def check(self):
        errs = []
        for it in self.items.values():
            for a in it["acc"]:
                if a["end"] is None: errs.append("%s: access %s never waited" % (it["name"], a["tag"]))
            reads = [a for a in it["acc"] if not a["write"]]
            writes = [a for a in it["acc"] if a["write"]]
            if it["first"] is not None:
                if it["land"] is None: errs.append("%s: DMA never waited" % it["name"])
                else:
                    for a in reads:
                        if a["start"] < it["land"]: errs.append("%s: read at epoch %d before landing certified (%d)" % (it["name"], a["start"], it["land"]))
            if writes and not it["private"]:
                wend = max(a["end"] for a in writes if a["end"] is not None)
                for a in reads:
                    if a["start"] <= wend: errs.append("%s: read at epoch %d, last write done in %d" % (it["name"], a["start"], wend))
            starts = [a["start"] for a in it["acc"]] + ([it["first"]] if it["first"] is not None else [])
            ends = [a["end"] for a in it["acc"] if a["end"] is not None] + ([it["land"] - 1] if it["land"] is not None else [])
            it["t0"] = min(starts) if starts else None; it["t1"] = max(ends) if ends else None
        L = [it for it in self.items.values() if it["t0"] is not None]
        for i, a in enumerate(L):
            for b in L[i + 1:]:
                if a["addr"] < b["addr"] + b["size"] and b["addr"] < a["addr"] + a["size"]:
                    x, y = (a, b) if a["t0"] <= b["t0"] else (b, a)
                    if not (x["t1"] < y["t0"]):
                        errs.append("overlap %s [%d..%d] vs %s [%d..%d]" % (x["name"], x["t0"], x["t1"], y["name"], y["t0"], y["t1"]))
        return errs
```

```python
import sys, math, struct
from asmlib import *

KNAME = "recurrent_scan__spectral_fnet__mixer_s_mlp__prompt_kernel"
WS_H, WS_X1, WS_U, WS_ST = 0, 0x200000, 0x400000, 0x980000
U_STRIDE = 0x2C000
WS_AT, WS_YT = 0xA00000, 0xC00000
WS_FG, WS_F1, WS_FY = 0xE00000, 0xE01000, 0xE02000
WS_STAMP = 0xF00000
WS_SIZE = 0x1000000
LB = 158 * 1024
L_MUW, L_A2W, L_A1W, L_MUU, L_A1U, L_MODE = LB, LB + 256, LB + 512, LB + 768, LB + 1088, LB + 1408
T0 = [0, 6, 12, 17, 22, 27, 32, 37]
NT = [6, 6, 5, 5, 5, 5, 5, 6]
SPIN = 1 << 15

def f2u(x): return struct.unpack("<I", struct.pack("<f", x))[0]
def hx(x): return "0x%x" % (x & 0xffffffff)
def fl(x): return hx(f2u(x))
def v(b, n=1): return "v%d" % b if n == 1 else "v[%d:%d]" % (b, b + n - 1)
def s(b, n=1): return "s%d" % b if n == 1 else "s[%d:%d]" % (b, b + n - 1)

SX, SW1, SW2, SW3, SW4, SOUT, SWS, SDBG = 4, 8, 12, 16, 20, 24, 28, 32
sG, sC, sSIG, sW, sM0, sOFF, sMODE = 48, 49, 50, 51, 52, 53, 54
sT0, sT1, sT2, sT3, sT4 = 55, 56, 57, 58, 59
sM3, sGH, sGU, sFG, sE = 60, 61, 62, 63, 64
sK = 66
sST = 68
EPS = 1e-5
K0 = -2.0 * math.sqrt(2.0 / math.pi) * math.log2(math.e)
K1 = K0 * 0.044715

class Opt:
    stamps = False
    force_slow = False
    LA = 6
    prioA = 1
opt = Opt()

G = lambda i: 8192 * i
def build():
    lds = Lds(160 * 1024)
    XSL = [0, 1, 3, 5, 7, 9, 11, 13]; W1SL = [8, 10, 12, 14, 17, 18, 15, 16]
    W2SL = [4, 6, 8, 10, 12, 14, 17, 18]; HSL = [3, 5, 7, 9, 11, 13, 15, 16]
    for j in range(8):
        lds.item("X%d" % j, G(XSL[j]), 8192); lds.item("W1_%d" % j, G(W1SL[j]), 8192)
        lds.item("W2_%d" % j, G(W2SL[j]), 8192); lds.item("H%d" % j, G(HSL[j]), 8192)
        lds.item("X1_%d" % j, G(15 + j % 4), 8192)
    lds.item("XS", G(2), 8192); lds.item("TMP", G(2), 8192, private=True)
    for m in range(16): lds.item("W3_%d" % m, 12288 * (m % 9), 12288)
    lds.item("AP", G(14), 8192); lds.item("YS", G(14), 8192); lds.item("YT", G(14), 8192)
    lds.item("STATS", LB, 1408); lds.item("MODE", L_MODE, 4)
    W4SL = [11, 12, 13, 0, 15, 1, 2, 3, 16, 4, 5, 6, 17, 7]; USL = [8, 9, 10, 18]
    order = []
    slot_of = {}
    for j in range(14): slot_of["W4_%d" % j] = W4SL[j]
    for j in range(4): slot_of["U%d" % j] = USL[j]
    g4_issue = {j: [] for j in range(22)}
    free = []
    pend = []
    for j in range(4, 22):
        pend.append("U%d" % j)
        if j + 6 < 22 and j + 6 >= 14: pend.append("W4_%d" % (j + 6))
    for j in range(2, 22):
        free += [slot_of["U%d" % (j - 2)], slot_of["W4_%d" % (j - 2)]]
        n = 0
        while pend and free and n < 2:
            it = pend[0]
            idx = int(it.split("_")[-1]) if it.startswith("W4") else int(it[1:])
            if it.startswith("U") and idx > j + 5: break
            pend.pop(0); slot_of[it] = free.pop(0); g4_issue[j].append(it); n += 1
    assert not pend, pend
    for j in range(22):
        sz = 8192 if j < 21 else 4096
        lds.item("W4_%d" % j, G(slot_of["W4_%d" % j]), sz); lds.item("U%d" % j, G(slot_of["U%d" % j]), sz)

    P0 = Prog("pro", lds); A = Prog("A", lds); B = Prog("B", lds)
    nst = {"A": 0, "B": 0}; stnames = {"A": [], "B": []}
    def stamp(P, name):
        if not opt.stamps: return
        i = nst[P.name]; assert i < 17
        P("s_memtime %s" % s(sST + 2 * i, 2)); nst[P.name] += 1; stnames[P.name].append(name)
    uid = [0]
    def lab(x): uid[0] += 1; return "L%s_%d" % (x, uid[0])

    P = P0
    P("s_cmp_ge_u32 s2, 256\ns_cbranch_scc1 LEND")
    if opt.stamps: P("s_memtime %s" % s(sST, 2)); nst["A"] = nst["B"] = 1; stnames["A"].append("start"); stnames["B"].append("start")
    P("s_load_dwordx2 s[4:5], s[0:1], 0\ns_load_dwordx8 s[36:43], s[0:1], 48\ns_load_dwordx4 s[44:47], s[0:1], 80\ns_load_dwordx2 s[28:29], s[0:1], 96")
    P("v_lshrrev_b32 v1, 6, v0\nv_and_b32 v0, 63, v0\nv_readfirstlane_b32 %s, v1" % s(sW))
    P("s_and_b32 s3, s2, 7\ns_lshr_b32 %s, s2, 3\ns_and_b32 %s, %s, 7\ns_lshr_b32 %s, %s, 3" % (s(sT0), s(sC), s(sT0), s(sT1), s(sT0)))
    P("s_lshl_b32 %s, s3, 2\ns_add_u32 %s, %s, %s" % (s(sG), s(sG), s(sG), s(sT1)))
    P("s_lshr_b32 s3, %s, 2\ns_add_u32 %s, s3, 1\ns_sub_u32 s3, 0, %s\ns_bitcmp1_b32 %s, 1\ns_cselect_b32 %s, s3, %s" % (s(sC), s(sSIG), s(sSIG), s(sC), s(sSIG), s(sSIG)))
    P("s_mov_b32 s6, 0x200000\ns_mov_b32 s7, 0x20000\ns_mov_b32 s30, %s\ns_mov_b32 s31, 0x20000" % hx(WS_SIZE))
    P("s_lshl_b32 %s, %s, 16" % (s(sGH), s(sG)))
    P("s_mul_i32 %s, %s, %s\ns_add_u32 %s, %s, %s" % (s(sGU), s(sG), hx(U_STRIDE), s(sGU), s(sGU), hx(WS_U)))
    P("s_lshl_b32 %s, %s, 7\ns_add_u32 %s, %s, %s" % (s(sFG), s(sG), s(sFG), s(sFG), hx(WS_FG)))
    P("s_cmp_ge_u32 %s, 4\ns_cbranch_scc1 LA_START" % s(sW))
    for Q in (A, B): Q.vfree[0] = False

    def stats_math(P, vS, vQ, vMu, vA1, vA2, t):
        P("v_mul_f32 %s, %s, %s" % (v(vMu), fl(1 / 512), v(vS)))
        P("v_mul_f32 %s, %s, %s" % (v(t), v(vMu), v(vMu)))
        P("v_fmamk_f32 %s, %s, %s, %s" % (v(vQ), v(vQ), fl(-1 / 512), v(t)))
        P("v_sub_f32 %s, 0, %s" % (v(vQ), v(vQ)))
        P("v_max_f32 %s, 0, %s" % (v(vQ), v(vQ)))
        P("v_add_f32 %s, %s, %s" % (v(t), fl(EPS), v(vQ)))
        P("v_rsq_f32 %s, %s" % (v(vA1), v(t)))
        if vA2 is not None:
            P("v_mul_f32 %s, %s, %s" % (v(t), v(vQ), v(vA1)))
            P("v_fmaak_f32 %s, %s, %s, %s" % (v(t), v(t), v(vA1), fl(EPS)))
            P("v_rsq_f32 %s, %s" % (v(t), v(t)))
            P("v_mul_f32 %s, %s, %s" % (v(vA2), v(t), v(vA1)))
    def spread(P, a, b):
        P("v_mov_b32 %s, %s\nv_permlane32_swap_b32 %s, %s" % (v(b), v(a), v(a), v(b)))
    def fold32(P, a, b):
        P("v_permlane32_swap_b32 %s, %s\nv_add_f32 %s, %s, %s" % (v(a), v(b), v(a), v(a), v(b)))
    def fold16(P, a, b):
        P("v_mov_b32 %s, %s\nv_permlane16_swap_b32 %s, %s\nv_add_f32 %s, %s, %s" % (v(b), v(a), v(a), v(b), v(a), v(a), v(b)))
    def win(regs, addr):
        w = addr >> 16
        return regs[w], addr - (w << 16)
    def spin(P, load, cmp_, pre_wait=True):
        lp, out = lab("poll"), lab("pollok")
        P("s_mov_b32 %s, 0" % s(sT4))
        P("%s:" % lp)
        P(load); P("s_waitcnt vmcnt(0)"); P(cmp_)
        P("s_add_u32 %s, %s, 1\ns_cmp_eq_u64 vcc, exec\ns_cbranch_scc1 %s" % (s(sT4), s(sT4), out))
        P("s_cmp_lt_u32 %s, %s\ns_cbranch_scc1 %s" % (s(sT4), hx(SPIN), lp))
        P("%s:" % out)

    P = B
    vX0, vX1, vWp, vL = [P.valloc(1) for _ in range(4)]
    t0, t1, t2, t3, t4, t5 = [P.valloc(1) for _ in range(6)]
    vI0 = P.valloc(1)
    fill = []
    def filler(n):
        for _ in range(n):
            if fill: P(fill.pop(0))
    def dma(item, srd, voff, soff, m0b, loff, sc1=False, nfill=0):
        P("s_add_u32 m0, %s, %s" % (s(m0b), hx(lds.addr(item) + loff)))
        if soff[0] is None and soff[1] == 0: so = "0"; P("s_nop 0")
        elif soff[0] is None: P("s_mov_b32 %s, %s" % (s(sOFF), hx(soff[1]))); so = s(sOFF)
        elif soff[1] == 0: so = s(soff[0]); P("s_nop 0")
        else: P("s_add_u32 %s, %s, %s" % (s(sOFF), s(soff[0]), hx(soff[1]))); so = s(sOFF)
        lds.dma(item, P)
        P.vmem("buffer_load_dwordx4 %s, %s, %s offen%s lds" % (v(voff), s(srd, 4), so, " sc1" if sc1 else ""), item)
        filler(nfill)
    vW3 = [P.valloc(1) for _ in range(3)]
    vXS = P.valloc(1); vY = P.valloc(1)
    def issue(item, nfill=0):
        import re as _re
        m = _re.fullmatch(r"(X1_|W1_|W2_|W3_|W4_|X|H|U)(\d+)", item)
        if m:
            k, j = m.group(1), int(m.group(2))
            halves = (0,) if (k in ("W4_", "U") and j == 21) else (0, 1)
            if k == "X":
                for hf in halves: dma(item, SX, (vX0, vX1)[hf], (None, 128 * j), sM0, 4096 * hf, nfill=nfill)
            elif k in ("W1_", "W2_", "W4_"):
                srd = {"W1_": SW1, "W2_": SW2, "W4_": SW4}[k]
                for hf in halves: dma(item, srd, vWp, (None, 65536 * j + 32768 * hf), sM0, 4096 * hf, nfill=nfill)
            elif k == "W3_":
                for n in range(3): dma(item, SW3, vW3[n], (None, 32 * 2752 * j), sM3, 1024 * n, nfill=nfill)
            elif k == "H":
                for hf in halves: dma(item, SWS, vL, (sGH, WS_H + 8192 * j + 4096 * hf), sM0, 4096 * hf, True, nfill)
            elif k == "X1_":
                for hf in halves: dma(item, SWS, vL, (sGH, WS_X1 + 8192 * j + 4096 * hf), sM0, 4096 * hf, True, nfill)
            elif k == "U":
                for hf in halves: dma(item, SWS, vL, (sGU, 8192 * j + 4096 * hf), sM0, 4096 * hf, True, nfill)
        elif item == "XS":
            for hf in (0, 1): dma(item, SX, vXS, (None, 32768 * hf), sM0, 4096 * hf, nfill=nfill)
        elif item == "AP":
            P("s_lshl_b32 %s, %s, 13" % (s(sT0), s(sE)))
            for hf in (0, 1): dma(item, SWS, vL, (sT0, WS_AT - 8192 + 4096 * hf), sM0, 4096 * hf, True, nfill)
        elif item == "YT":
            P("s_lshl_b32 %s, %s, 18" % (s(sT0), s(sC)))
            for hf in (0, 1): dma(item, SWS, vY, (sT0, WS_YT + 131072 * hf), sM0, 4096 * hf, True, nfill)
        else: raise ValueError(item)

    P("s_lshl_b32 %s, %s, 10\ns_lshl_b32 s3, %s, 3" % (s(sM0), s(sW), s(sW)))
    P("v_lshrrev_b32 %s, 3, v0\nv_add_u32 %s, s3, %s" % (v(t0), v(vI0), v(t0)))
    P("v_and_b32 %s, 7, v0\nv_bfe_u32 %s, %s, 1, 3\nv_xor_b32 %s, %s, %s\nv_lshlrev_b32 %s, 4, %s" % (v(t1), v(t2), v(vI0), v(t2), v(t1), v(t2), v(t2), v(t2)))
    P("s_lshl_b32 %s, %s, 6\ns_sub_u32 s3, %s, %s" % (s(sT0), s(sG), s(sT0), s(sSIG)))
    P("v_add_u32 %s, s3, %s\nv_add_u32 %s, 32, %s" % (v(t3), v(vI0), v(t4), v(t3)))
    P("v_and_b32 %s, 0x7ff, %s\nv_and_b32 %s, 0x7ff, %s" % (v(t3), v(t3), v(t4), v(t4)))
    P("v_lshl_add_u32 %s, %s, 10, %s\nv_lshl_add_u32 %s, %s, 10, %s" % (v(vX0), v(t3), v(t2), v(vX1), v(t4), v(t2)))
    P("s_waitcnt lgkmcnt(0)")
    stamp(P, "karg")
    issue("X0"); issue("X1")
    def srd_setup(P):
        for dst, src, size in ((SW1, 36, 0x80000), (SW2, 38, 0x80000), (SW3, 40, 512 * 2752), (SW4, 42, 1376 * 1024), (SOUT, 44, 0x200000), (SDBG, 46, 256)):
            P("s_mov_b32 %s, %s\ns_mov_b32 %s, %s\ns_mov_b32 %s, %s\ns_mov_b32 %s, 0x20000" % (s(dst), s(src), s(dst + 1), s(src + 1), s(dst + 2), hx(size), s(dst + 3)))
    srd_setup(P)
    P("s_lshl_b32 %s, %s, 7" % (s(sT1), s(sC)))
    P("v_add_u32 %s, %s, %s\nv_lshl_add_u32 %s, %s, 10, %s\nv_add_u32 %s, %s, %s" % (v(t3), s(sT0), v(vI0), v(vXS), v(t3), v(t2), v(vXS), s(sT1), v(vXS)))
    P("v_bfe_u32 %s, %s, 1, 1\nv_lshlrev_b32 %s, 2, %s\nv_xor_b32 %s, %s, %s\nv_lshlrev_b32 %s, 4, %s" % (v(t3), v(vI0), v(t3), v(t3), v(t3), v(t3), v(t1), v(t3), v(t3)))
    P("v_lshl_add_u32 %s, %s, 10, %s\nv_add_u32 %s, %s, %s" % (v(vWp), v(vI0), v(t3), v(vWp), s(sT1), v(vWp)))
    P("s_lshl_b32 %s, %s, 7\nv_lshl_add_u32 %s, %s, 12, %s\nv_add_u32 %s, %s, %s" % (s(sT1), s(sG), v(vY), v(vI0), v(t3), v(vY), s(sT1), v(vY)))
    P("v_lshlrev_b32 %s, 4, v0\nv_add_u32 %s, %s, %s" % (v(vL), v(vL), s(sM0), v(vL)))
    issue("X2")
    vZ = P.valloc(4, 4); vLn4 = P.valloc(1); vLn16 = P.valloc(1)
    P("v_mov_b32 %s, 0\nv_mov_b32 %s, 0\nv_mov_b32 %s, 0\nv_mov_b32 %s, 0" % tuple(v(vZ + i) for i in range(4)))
    P("v_lshlrev_b32 %s, 2, v0\nv_lshlrev_b32 %s, 4, v0" % (v(vLn4), v(vLn16)))
    l1, l2 = lab("z"), lab("z")
    P("s_or_b32 s3, %s, %s\ns_cbranch_scc1 %s" % (s(sC), s(sW), l1))
    P.begin_opt()
    P("s_mov_b64 exec, 0xff"); P.vmem("buffer_store_dwordx4 %s, %s, %s, %s offen sc1" % (v(vZ, 4), v(vLn16), s(SWS, 4), s(sFG)), "zero", True); P("s_mov_b64 exec, -1")
    P.end_opt(); P("%s:" % l1)
    P("s_or_b32 s3, %s, %s\ns_cbranch_scc1 %s" % (s(sG), s(sW), l2))
    P.begin_opt()
    P("s_lshl_b32 s3, %s, 9\ns_add_u32 s3, s3, %s\ns_mov_b32 exec_hi, 0" % (s(sC), hx(WS_F1)))
    P.vmem("buffer_store_dwordx4 %s, %s, %s, s3 offen sc1" % (v(vZ, 4), v(vLn16), s(SWS, 4)), "zero", True)
    P("s_lshl_b32 s3, %s, 8\ns_add_u32 s3, s3, %s\ns_mov_b64 exec, 0xffff" % (s(sC), hx(WS_FY)))
    P.vmem("buffer_store_dwordx4 %s, %s, %s, s3 offen sc1" % (v(vZ, 4), v(vLn16), s(SWS, 4)), "zero", True)
    P("s_mov_b64 exec, -1")
    P.end_opt(); P("%s:" % l2)
    stream = ["X%d" % j for j in range(3, 8)] + ["XS"] + ["W1_%d" % j for j in range(8)] + ["W2_%d" % j for j in range(8)] + ["W3_0"]
    for _ in range(opt.LA - 3): issue(stream.pop(0))
    vE = P.valloc(4, 4)
    P("s_sub_u32 s3, 63, %s\ns_cmp_gt_i32 %s, 0\ns_cselect_b32 %s, s3, %s" % (s(sW), s(sSIG), s(sT2), s(sW)))
    P("s_lshl_b32 s3, %s, 10\ns_add_u32 s3, s3, %s" % (s(sT2), s(sGH)))
    P.vmem("buffer_load_dwordx4 %s, %s, %s, s3 offen" % (v(vE, 4), v(vLn16), s(SX, 4)), "edge")
    P("s_mul_i32 %s, %s, 3072" % (s(sM3), s(sW)))
    P("s_mul_i32 %s, %s, 5\ns_min_u32 s3, %s, 2\ns_add_u32 %s, %s, s3\ns_lshl_b32 %s, %s, 6" % (s(sT3), s(sC), s(sC), s(sT3), s(sT3), s(sT3), s(sT3)))
    P("s_mul_i32 s3, %s, %d\ns_add_u32 %s, %s, s3" % (s(sW), 8 * 2752, s(sT3), s(sT3)))
    for n in range(3):
        P("v_add_u32 %s, %d, v0" % (v(t3), 64 * n))
        P("v_mul_u32_u24 %s, 0xaab, %s\nv_lshrrev_b32 %s, 16, %s" % (v(t4), v(t3), v(t4), v(t4)))
        P("v_mul_u32_u24 %s, 24, %s\nv_sub_u32 %s, %s, %s" % (v(t5), v(t4), v(t3), v(t3), v(t5)))
        P("v_bfe_u32 %s, %s, 1, 1\nv_lshlrev_b32 %s, 2, %s\nv_xor_b32 %s, %s, %s" % (v(t5), v(t4), v(t5), v(t5), v(t3), v(t3), v(t5)))
        P("v_mul_u32_u24 %s, 0xac0, %s\nv_lshl_add_u32 %s, %s, 4, %s\nv_add_u32 %s, %s, %s" % (v(t4), v(t4), v(t3), v(t3), v(t4), v(vW3[n]), s(sT3), v(t3)))
    P("s_lshl_b32 %s, %s, 5\ns_add_u32 %s, %s, %s\ns_add_u32 %s, %s, 1" % (s(sE), s(sC), s(sE), s(sE), s(sG), s(sE), s(sE)))
    vSa = [[P.valloc(1) for _ in range(2)] for _ in range(2)]
    vI = P.valloc(1); vQ_ = P.valloc(1)
    P("v_and_b32 %s, 15, v0\nv_lshrrev_b32 %s, 4, v0" % (v(vI), v(vQ_)))
    P("v_lshrrev_b32 %s, 1, %s\nv_xor_b32 %s, %s, %s\nv_lshlrev_b32 %s, 4, %s" % (v(t3), v(vI), v(t3), v(t3), v(vQ_), v(t3), v(t3)))
    P("v_lshl_add_u32 %s, %s, 7, %s\ns_lshl_b32 s3, %s, 11\nv_add_u32 %s, s3, %s" % (v(t3), v(vI), v(t3), s(sW), v(vSa[0][0]), v(t3)))
    P("v_xor_b32 %s, 64, %s\nv_add_u32 %s, 0x10000, %s\nv_add_u32 %s, 0x10000, %s" % (v(vSa[0][1]), v(vSa[0][0]), v(vSa[1][0]), v(vSa[0][0]), v(vSa[1][1]), v(vSa[0][1])))
    vS, vQ = P.valloc(1), P.valloc(1); vOne = P.valloc(1)
    P("v_mov_b32 %s, 0\nv_mov_b32 %s, 0\nv_mov_b32 %s, 0x3f803f80" % (v(vS), v(vQ), v(vOne)))
    sbuf = [P.valloc(8, 4), P.valloc(8, 4)]
    def sdots(b):
        for i in range(8): P("v_dot2c_f32_bf16 %s, %s, %s\nv_dot2c_f32_bf16 %s, %s, %s" % (v(vS), v(vOne), v(b + i), v(vQ), v(b + i), v(b + i)))
    for j in range(8):
        P.wait_vm("X%d" % j)
        if j == 0: stamp(P, "X0")
        P.barrier("X%d" % j)
        for par in range(2):
            a = lds.addr("X%d" % j); r_, im = win([vSa[0][par], vSa[1][par]], a)
            P.ds("ds_read_b128 %s, %s offset:%d" % (v(sbuf[j & 1] + 4 * par, 4), v(r_), im), "sx%d" % j, "X%d" % j)
        issue(stream.pop(0))
        if j == 2:
            pass
        if j == 4:
            P.wait_vm("zero")
            l3 = lab("post")
            P("s_cmp_lg_u32 %s, 0\ns_cbranch_scc1 %s" % (s(sW), l3))
            P.begin_opt()
            P("s_getreg_b32 s3, hwreg(HW_REG_XCC_ID, 0, 4)\ns_or_b32 s3, s3, 0x80\nv_mov_b32 %s, s3" % v(t5))
            P("s_lshl_b32 s3, %s, 3\ns_add_u32 s3, s3, %s\ns_mov_b64 exec, 1" % (s(sG), s(sC)))
            P.vmem("buffer_store_byte %s, off, %s, s3 sc1" % (v(t5), s(SDBG, 4)), "post", True)
            P("s_mov_b64 exec, -1")
            P.end_opt(); P("%s:" % l3)
        if j > 0:
            P.wait_lg("sx%d" % (j - 1)); sdots(sbuf[(j - 1) & 1])
    P.wait_lg("sx7"); sdots(sbuf[1])
    stamp(P, "X7")
    vMu, vA1, vA2 = P.valloc(1), P.valloc(1), P.valloc(1)
    for j in range(8):
        P.wait_vm("W1_%d" % j)
        P.barrier("W%d" % j)
        issue(stream.pop(0))
        if j == 0:
            fold32(P, vS, vQ); fold16(P, vS, vQ); spread(P, vS, vQ)
            stats_math(P, vS, vQ, vMu, vA1, vA2, t3)
            P("s_lshl_b32 s3, %s, 6\nv_lshl_add_u32 %s, %s, 2, s3" % (s(sW), v(t3), v(vI)))
            P("v_add_u32 %s, %s, %s" % (v(t3), hx(LB), v(t3)))
            P("s_lshl_b32 s3, %s, 2\nv_subrev_u32 %s, s3, %s" % (s(sSIG), v(t4), v(t3)))
            P.ds("ds_write_b32 %s, %s" % (v(t3), v(vMu)), "st", "STATS", True)
            P.ds("ds_write_b32 %s, %s offset:256" % (v(t3), v(vA2)), "st", "STATS", True)
            P.ds("ds_write_b32 %s, %s offset:512" % (v(t3), v(vA1)), "st", "STATS", True)
            P.ds("ds_write_b32 %s, %s offset:%d" % (v(t4), v(vMu), 768 + 8), "st", "STATS", True)
            P.ds("ds_write_b32 %s, %s offset:%d" % (v(t4), v(vA1), 1088 + 8), "st", "STATS", True)
        if j == 1:
            P.wait_vm("edge")
            P("v_mov_b32 %s, 0\nv_mov_b32 %s, 0" % (v(vS), v(vQ)))
            for i in range(4): P("v_dot2c_f32_bf16 %s, %s, %s\nv_dot2c_f32_bf16 %s, %s, %s" % (v(vS), v(vOne), v(vE + i), v(vQ), v(vE + i), v(vE + i)))
            fold32(P, vS, vQ); fold16(P, vS, vQ)
            for rr in (8, 4, 2, 1): P("v_add_f32_dpp %s, %s, %s row_ror:%d row_mask:0xf bank_mask:0xf" % (v(vS), v(vS), v(vS), rr))
            spread(P, vS, vQ)
            stats_math(P, vS, vQ, vMu, vA1, None, t3)
            P("s_abs_i32 s3, %s\ns_add_u32 %s, %s, 2\ns_cmp_lt_u32 %s, s3\ns_cselect_b32 s3, %s, 70\ns_lshl_b32 s3, s3, 2\ns_add_u32 s3, s3, %s\nv_mov_b32 %s, s3" % (s(sSIG), s(sT2), s(sT2), s(sW), s(sT2), hx(L_MUU), v(t3)))
            P.ds("ds_write_b32 %s, %s" % (v(t3), v(vMu)), "st", "STATS", True)
            P.ds("ds_write_b32 %s, %s offset:320" % (v(t3), v(vA1)), "st", "STATS", True)
        if j == 2:
            P("s_lshl_b32 s3, %s, 3\nv_and_b32 %s, 4, %s\nv_and_b32 %s, 2, v0\nv_cmp_eq_u32 vcc, 0, %s" % (s(sG), v(t4), v(vLn4), v(t3), v(t3)))
            P("v_add_u32 %s, s3, %s\nv_cndmask_b32 %s, %s, %s, vcc" % (v(t3), v(t4), v(t4), v(t4), v(t3)))
            P.vmem("buffer_load_dword %s, %s, %s, 0 offen sc1" % (v(t5), v(t4), s(SDBG, 4)), "ann")
        if j == 5:
            P.wait_vm("ann")
            ok = lab("annok")
            chk = "v_and_b32 %s, 0x80808080, %s\nv_cmp_eq_u32 vcc, 0x80808080, %s" % (v(t3), v(t5), v(t3))
            P(chk); P("s_cmp_eq_u64 vcc, exec\ns_cbranch_scc1 %s" % ok)
            P.begin_opt()
            spin(P, "buffer_load_dword %s, %s, %s, 0 offen sc1" % (v(t5), v(t4), s(SDBG, 4)), chk)
            P.end_opt(); P("%s:" % ok)
            P("s_getreg_b32 s3, hwreg(HW_REG_XCC_ID, 0, 4)\ns_or_b32 s3, s3, 0x80\ns_mul_i32 s3, s3, 0x01010101")
            P("v_cmp_eq_u32 vcc, s3, %s\ns_and_b32 s3, vcc_lo, 3\ns_cmp_eq_u32 s3, 3\ns_cselect_b32 s3, %d, 0" % (v(t5), 0 if opt.force_slow else 1))
            P("v_mov_b32 %s, s3\nv_mov_b32 %s, %s" % (v(t3), v(t4), hx(L_MODE)))
            P.ds("ds_write_b32 %s, %s" % (v(t4), v(t3)), "st", "MODE", True)
        if j in (0, 1, 5): P.wait_lg("st")
    stamp(P, "W7")
    while stream: issue(stream.pop(0))
    for r_ in sbuf: P.vfree_(r_, 8)
    P.vfree_(vE, 4); P.vfree_(vZ, 4)
    vC = P.valloc(8, 4); vSn = P.valloc(8, 4); vNS = P.valloc(8, 4); vTc = P.valloc(8, 4); vTs = P.valloc(8, 4); vC2 = P.valloc(8, 4); vS2 = P.valloc(8, 4)
    a_, d_, d25, c0, c1, tf, sg = [P.valloc(1) for _ in range(7)]
    def gen_run(dst, n, op, jump_at, jump):
        for k in range(0, n, 2):
            fill.append("%s %s, %s\nv_add_f32 %s, %s, %s" % (op, v(c0), v(a_), v(a_), v(a_), v(d_)))
            nxt = jump if (k + 2) % jump_at == 0 else d_
            fill.append("%s %s, %s\nv_add_f32 %s, %s, %s\nv_cvt_pk_bf16_f32 %s, %s, %s" % (op, v(c1), v(a_), v(a_), v(a_), v(nxt), v(dst + k // 2), v(c0), v(c1)))
    fill.append("s_lshl_b32 s3, %s, 4\nv_add_u32 %s, s3, %s\nv_cvt_f32_u32 %s, %s\nv_cvt_f32_u32 %s, %s" % (s(sW), v(tf), v(vI), v(tf), v(tf), v(sg), v(vQ_)))
    fill.append("v_mul_f32 %s, %s, %s\nv_mul_f32 %s, %s, %s" % (v(d_), fl(1 / 64), v(tf), v(d25), fl(25 / 64), v(tf)))
    for dst, op in ((vC, "v_cos_f32"), (vSn, "v_sin_f32")):
        fill.append("v_mul_f32 %s, %s, %s\nv_mul_f32 %s, %s, %s" % (v(a_), fl(8.0), v(sg), v(a_), v(a_), v(d_)))
        gen_run(dst, 16, op, 8, d25)
    for i in range(0, 8, 2): fill.append("v_xor_b32 %s, 0x80008000, %s\nv_xor_b32 %s, 0x80008000, %s" % (v(vNS + i), v(vSn + i), v(vNS + i + 1), v(vSn + i + 1)))
    fill.append("v_cvt_f32_i32 %s, %s\nv_mul_f32 %s, 4.0, %s\nv_sub_f32 %s, %s, %s" % (v(c0), s(sSIG), v(sg), v(sg), v(sg), v(sg), v(c0)))
    fill.append("v_mul_f32 %s, %s, %s\nv_mul_f32 %s, %s, %s\nv_mul_f32 %s, %s, %s" % (v(d_), fl(1 / 2048), v(tf), v(d25), fl(13 / 2048), v(tf), v(a_), v(sg), v(d_)))
    for k in range(8):
        fill.append("v_cos_f32 %s, %s\nv_sin_f32 %s, %s\nv_add_f32 %s, %s, %s" % (v(vTc + k), v(a_), v(vTs + k), v(a_), v(a_), v(a_), v(d25 if k == 3 else d_)))
    for mt2 in range(2):
        fill.append("v_add_u32 %s, %d, %s\nv_cvt_f32_u32 %s, %s\nv_mul_f32 %s, %s, %s\nv_mul_f32 %s, %s, %s" % (v(tf), 16 * mt2, v(vI), v(tf), v(tf), v(d_), fl(1 / 32), v(tf), v(d25), fl(13 / 32), v(tf)))
        for dst, op in ((vC2, "v_cos_f32"), (vS2, "v_sin_f32")):
            fill.append("v_mul_f32 %s, %s, %s" % (v(a_), v(sg), v(d_)))
            gen_run(dst + 4 * mt2, 8, op, 4, d25)
    filler(len(fill) * 5 // 8)
    stamp(P, "preP1")
    P.barrier("P1")
    st2 = ["H%d" % j for j in range(8)]
    for _ in range(4): issue(st2.pop(0))
    pre3 = {4: [], 5: ["W3_1"], 6: ["W3_2"], 7: ["W3_3"]}
    for j in range(8):
        P.wait_vm("H%d" % j)
        if j == 0: stamp(P, "H0")
        P.barrier("H%d" % j)
        if st2: issue(st2.pop(0))
        for it in pre3.get(j, []): issue(it)
    stamp(P, "H7")
    for m in range(4, 9): issue("W3_%d" % m, 3)
    filler(1000)
    stamp(P, "preP2")
    P.barrier("P2")
    for j in range(4): issue("X1_%d" % j)
    vD = P.valloc(32, 4); vYr = P.valloc(8, 4); vYi = P.valloc(8, 4); vZ2 = P.valloc(8, 4)
    vFa, vFb, vFc, vFd = [P.valloc(1) for _ in range(4)]
    g3 = {1: ["X1_4", "W3_9", "W3_10"], 2: ["X1_5", "W3_11"], 3: ["W3_12", "X1_6", "W3_13"], 4: ["X1_7", "W3_14", "W3_15"],
          5: ["W4_0", "W4_1", "W4_2"], 6: ["W4_3", "W4_4"], 7: ["W4_5", "W4_6"]}
    for j in range(8):
        P.wait_vm("X1_%d" % j, "W3_%d" % (2 * j), "W3_%d" % (2 * j + 1))
        if j == 3: P.wait_vm("AP")
        if j == 0: stamp(P, "X1_0")
        P.barrier("G3_%d" % j)
        if j == 0:
            P("s_lshl_b32 s3, %s, 9\ns_lshr_b32 %s, %s, 3\ns_lshl_b32 %s, %s, 7\ns_add_u32 s3, s3, %s\ns_add_u32 %s, s3, %s" % (s(sC), s(sT0), s(sG), s(sT0), s(sT0), s(sT0), s(sT1), hx(WS_F1)))
            P("v_and_b32 %s, 0x7c, %s" % (v(t4), v(vLn4)))
            P.vmem("buffer_load_dword %s, %s, %s, %s offen sc1" % (v(t5), v(t4), s(SWS, 4), s(sT1)), "f1flag")
        if j == 1:
            P.wait_vm("f1flag")
            ok = lab("f1ok"); chk = "v_cmp_ne_u32 vcc, 0, %s" % v(t5)
            P(chk); P("s_cmp_eq_u64 vcc, exec\ns_cbranch_scc1 %s" % ok)
            P.begin_opt(); spin(P, "buffer_load_dword %s, %s, %s, %s offen sc1" % (v(t5), v(t4), s(SWS, 4), s(sT1)), chk); P.end_opt(); P("%s:" % ok)
            issue("AP")
        if j == 3:
            P("v_bfe_u32 %s, v0, 2, 2\nv_lshl_add_u32 %s, %s, 3, %s\nv_and_b32 %s, 3, v0\nv_lshlrev_b32 %s, 3, %s" % (v(t3), v(t3), v(vQ_), v(t3), v(t4), v(t4), v(t4)))
            P("v_lshl_add_u32 %s, %s, 6, %s\nv_add_u32 %s, %s, %s" % (v(vFa), v(t3), v(t4), v(vFa), hx(lds.addr("AP")), v(vFa)))
            for part in range(2):
                for mt in range(2):
                    for kk in range(2):
                        for a in range(2):
                            P.ds("ds_read_b64_tr_b16 %s, %s offset:%d" % (v(vD + 16 * part + 8 * mt + 4 * kk + 2 * a, 2), v(vFa), 4096 * part + 2048 * kk + 256 * a + 32 * mt), "ap", "AP")
        for it in g3.get(j, []): issue(it)
        if j == 3:
            P.wait_lg("ap")
            for mt in range(2):
                for kk in range(2):
                    ar, ai = vD + 8 * mt + 4 * kk, vD + 16 + 8 * mt + 4 * kk
                    cin_r = "0" if kk == 0 else v(vYr + 4 * mt, 4); cin_i = "0" if kk == 0 else v(vYi + 4 * mt, 4)
                    P("v_mfma_f32_16x16x32_bf16 %s, %s, %s, %s" % (v(vYr + 4 * mt, 4), v(ar, 4), v(vC + 4 * kk, 4), cin_r))
                    P("v_mfma_f32_16x16x32_bf16 %s, %s, %s, %s" % (v(vYi + 4 * mt, 4), v(ai, 4), v(vC + 4 * kk, 4), cin_i))
                    P("v_mfma_f32_16x16x32_bf16 %s, %s, %s, %s" % (v(vYr + 4 * mt, 4), v(ai, 4), v(vSn + 4 * kk, 4), v(vYr + 4 * mt, 4)))
                    P("v_mfma_f32_16x16x32_bf16 %s, %s, %s, %s" % (v(vYi + 4 * mt, 4), v(ar, 4), v(vNS + 4 * kk, 4), v(vYi + 4 * mt, 4)))
        if j == 4:
            for k in range(0, 8, 2):
                P("v_pk_mul_f32 %s, %s, %s" % (v(vD + k, 2), v(vYr + k, 2), v(vTc + k, 2)))
                P("v_pk_mul_f32 %s, %s, %s" % (v(vD + 8 + k, 2), v(vYi + k, 2), v(vTc + k, 2)))
            for k in range(0, 8, 2):
                P("v_pk_fma_f32 %s, %s, %s, %s" % (v(vD + k, 2), v(vYi + k, 2), v(vTs + k, 2), v(vD + k, 2)))
                P("v_pk_fma_f32 %s, %s, %s, %s neg_lo:[1,0,0] neg_hi:[1,0,0]" % (v(vD + 8 + k, 2), v(vYr + k, 2), v(vTs + k, 2), v(vD + 8 + k, 2)))
            for k in range(8): P("v_cvt_pk_bf16_f32 %s, %s, %s" % (v(vD + 16 + k), v(vD + 2 * k), v(vD + 2 * k + 1)))
            for mt2 in range(2):
                P("v_mfma_f32_16x16x32_bf16 %s, %s, %s, 0" % (v(vZ2 + 4 * mt2, 4), v(vC2 + 4 * mt2, 4), v(vD + 16, 4)))
            for mt2 in range(2):
                P("v_mfma_f32_16x16x32_bf16 %s, %s, %s, %s" % (v(vZ2 + 4 * mt2, 4), v(vS2 + 4 * mt2, 4), v(vD + 20, 4), v(vZ2 + 4 * mt2, 4)))
            ya = lds.addr("YS")
            P("s_lshl_b32 s3, %s, 4\nv_add_u32 %s, s3, %s\nv_lshlrev_b32 %s, 1, %s\nv_lshl_add_u32 %s, %s, 9, %s" % (s(sW), v(t3), v(vI), v(t3), v(t3), v(t3), v(vQ_), v(t3)))
            P("v_add_u32 %s, %s, %s" % (v(vFb), hx(ya), v(t3)))
            P("v_sub_u32 %s, %s, %s" % (v(vFc), hx(ya + 4096 + 4096 - 2432), v(t3)))
            P("v_sub_u32 %s, 0x1000, %s\nv_and_b32 %s, 0xfff, %s\nv_add_u32 %s, %s, %s" % (v(vFd), v(t3), v(vFd), v(vFd), v(vFd), hx(ya + 4096), v(vFd)))
            for k in range(4): P("v_cvt_pk_bf16_f32 %s, %s, %s" % (v(vD + k), v(vZ2 + 2 * k), v(vZ2 + 2 * k + 1)))
            for k in range(8):
                mt2, r_ = k >> 2, k & 3; im = 2048 * mt2 + 128 * r_
                opn = "ds_write_b16_d16_hi" if k & 1 else "ds_write_b16"
                P.ds("%s %s, %s offset:%d" % (opn, v(vFb), v(vD + k // 2), im), "ys", "YS", True)
                if k == 0: P.ds("%s %s, %s" % (opn, v(vFd), v(vD)), "ys", "YS", True)
                else: P.ds("%s %s, %s offset:%d" % (opn, v(vFc), v(vD + k // 2), 2432 - im), "ys", "YS", True)
            P.wait_lg("ys")
        if j == 5:
            ly = lab("ystore")
            P("s_cmp_ge_u32 %s, 2\ns_cbranch_scc1 %s" % (s(sW), ly))
            P.begin_opt()
            P("s_lshl_b32 s3, %s, 12\ns_add_u32 s3, s3, %s\nv_add_u32 %s, s3, %s" % (s(sW), hx(lds.addr("YS")), v(t3), v(vLn16)))
            for k in range(4): P.ds("ds_read_b128 %s, %s offset:%d" % (v(vD + 4 * k, 4), v(t3), 1024 * k), "yr", "YS")
            P("s_sub_u32 s3, 512, %s\ns_cmp_eq_u32 %s, 0\ns_cselect_b32 %s, %s, s3" % (s(sE), s(sW), s(sT2), s(sE)))
            P("s_lshl_b32 s3, %s, 8\ns_add_u32 s3, s3, 256\ns_cmp_eq_u32 %s, 256\ns_cselect_b32 %s, s3, %s\ns_and_b32 %s, %s, 0x1ff" % (s(sW), s(sE), s(sT2), s(sT2), s(sT2), s(sT2)))
            P.wait_lg("yr")
            lz = lab("yz")
            P("s_cmp_lg_u32 %s, 0\ns_cbranch_scc1 %s" % (s(sT2), lz))
            for k in range(16): P("v_mov_b32 %s, 0" % v(vD + k))
            P("%s:" % lz)
            P("s_lshl_b32 s3, %s, 12\ns_add_u32 s3, s3, %s" % (s(sT2), hx(WS_YT)))
            for k in range(4): P.vmem("buffer_store_dwordx4 %s, %s, %s, s3 offen offset:%d sc1" % (v(vD + 4 * k, 4), v(vLn16), s(SWS, 4), 1024 * k), "yst", True)
            P.end_opt(); P("%s:" % ly)
        if j == 7:
            P.wait_vm("yst")
            ly = lab("yflag")
            P("s_cmp_ge_u32 %s, 2\ns_cbranch_scc1 %s" % (s(sW), ly))
            P.begin_opt()
            P("s_lshl_b32 s3, %s, 2\ns_add_u32 s3, s3, %s\nv_mov_b32 %s, 1\ns_mov_b64 exec, 1" % (s(sT2), hx(WS_FY), v(t5)))
            P.vmem("buffer_store_dword %s, off, %s, s3 sc1" % (v(t5), s(SWS, 4)), "yfl", True)
            P("s_mov_b64 exec, -1")
            P.end_opt(); P("%s:" % ly)
    stamp(P, "G3_7")
    P.barrier("G3end")
    for m in range(7, 14): issue("W4_%d" % m)
    stamp(P, "preP3")
    P.barrier("P3")
    for j in range(4): issue("U%d" % j)
    YJ = 10
    for j in range(22):
        P.wait_vm("U%d" % j, "W4_%d" % j)
        if j == 20: P.wait_vm("YT")
        if j == 0: stamp(P, "U0")
        P.barrier("G4_%d" % j)
        for it in g4_issue[j]: issue(it)
        if j == YJ:
            P("s_lshl_b32 s3, %s, 8\ns_add_u32 %s, s3, %s" % (s(sC), s(sT1), hx(WS_FY)))
            P.vmem("buffer_load_dword %s, %s, %s, %s offen sc1" % (v(t5), v(vLn4), s(SWS, 4), s(sT1)), "yflag")
        if j == YJ + 5:
            P.wait_vm("yflag")
            ok = lab("yok"); chk = "v_cmp_ne_u32 vcc, 0, %s" % v(t5)
            P(chk); P("s_cmp_eq_u64 vcc, exec\ns_cbranch_scc1 %s" % ok)
            P.begin_opt(); spin(P, "buffer_load_dword %s, %s, %s, %s offen sc1" % (v(t5), v(vLn4), s(SWS, 4), s(sT1)), chk); P.end_opt(); P("%s:" % ok)
            issue("YT")
    stamp(P, "end")
    def dump_stamps(P, role):
        if not opt.stamps: return
        n = nst[P.name]
        vt = P.valloc(2)
        P("s_waitcnt lgkmcnt(0)\nv_mov_b32 %s, 0" % v(vt))
        for i in range(n): P("v_writelane_b32 %s, %s, %d" % (v(vt), s(sST + 2 * i), i))
        P("s_lshl_b32 s3, s2, 3\ns_add_u32 s3, s3, %s\ns_add_u32 s3, s3, %d\ns_lshl_b32 s3, s3, 7\ns_add_u32 s3, s3, %s" % (s(sW), 4 * role, hx(WS_STAMP)))
        P("v_lshlrev_b32 %s, 2, v0\ns_mov_b32 exec_hi, 0" % v(vt + 1))
        P("buffer_store_dword %s, %s, %s, s3 offen" % (v(vt), v(vt + 1), s(SWS, 4)))
    dump_stamps(P, 0)
    P("s_endpgm")

    P = A
    P("LA_START:")
    P("s_sub_u32 %s, %s, 4" % (s(sW), s(sW)))
    if opt.prioA: P("s_setprio %d" % opt.prioA)
    t0, t1, t2, t3, t4, t5 = [P.valloc(1) for _ in range(6)]
    vPf = P.valloc(4, 4)
    P("s_getpc_b64 %s\nLPC:" % s(sK, 2))
    P("s_sub_u32 %s, %s, LPC-%s\ns_subb_u32 %s, %s, 0" % (s(sK), s(sK), KNAME, s(sK + 1), s(sK + 1)))
    P("s_lshl_b32 s3, %s, 2\ns_add_u32 s3, s3, %s\ns_lshl_b32 s3, s3, 10\nv_lshl_add_u32 %s, v0, 4, s3" % (s(sT0), s(sW), v(t0)))
    P("v_min_u32 %s, LCODE_END-%s-16, %s" % (v(t0), KNAME, v(t0)))
    lpf = lab("pf")
    P("s_cmp_ge_u32 s3, LCODE_END-%s\ns_cbranch_scc1 %s" % (KNAME, lpf))
    P.begin_opt(); P.vmem("global_load_dwordx4 %s, %s, %s" % (v(vPf, 4), v(t0), s(sK, 2)), "pf", True); P.end_opt()
    P("%s:" % lpf)
    vM = P.valloc(32, 4); vI = P.valloc(1); vQ_ = P.valloc(1); vSg = P.valloc(2)
    a_, d_, d25 = t3, t4, t5
    P("v_and_b32 %s, 15, v0\nv_lshrrev_b32 %s, 4, v0" % (v(vI), v(vQ_)))
    P("s_lshl_b32 s3, %s, 2\ns_add_u32 s3, s3, %s\ns_lshl_b32 s3, s3, 3\ns_add_u32 s3, s3, 1" % (s(sC), s(sW)))
    P("v_and_b32 %s, 7, v0\nv_add_u32 %s, s3, %s\nv_cvt_f32_u32 %s, %s" % (v(t0), v(t0), v(t0), v(t1), v(t0)))
    P("v_lshlrev_b32 %s, 31, %s\nv_or_b32 %s, 1.0, %s" % (v(vSg), v(t0), v(vSg), v(vSg)))
    P("v_mul_f32 %s, %s, %s\nv_mul_f32 %s, %s, %s" % (v(d_), fl(1 / 512), v(t1), v(d25), fl(25 / 512), v(t1)))
    P("v_bfe_u32 %s, v0, 3, 1\nv_cvt_f32_u32 %s, %s\nv_mul_f32 %s, %s, %s" % (v(t0), v(t0), v(t0), v(t0), fl(0.25), v(t0)))
    P("v_lshlrev_b32 %s, 3, %s\nv_cvt_f32_u32 %s, %s\nv_fma_f32 %s, %s, %s, %s" % (v(t1), v(vQ_), v(t1), v(t1), v(a_), v(t1), v(d_), v(t0)))
    for k in range(0, 64, 2):
        P("v_cos_f32 %s, %s\nv_add_f32 %s, %s, %s" % (v(t0), v(a_), v(a_), v(a_), v(d_)))
        P("v_cos_f32 %s, %s\nv_add_f32 %s, %s, %s" % (v(t1), v(a_), v(a_), v(a_), v(d25 if k % 8 == 6 else d_)))
        P("v_cvt_pk_bf16_f32 %s, %s, %s" % (v(vM + k // 2), v(t0), v(t1)))
    sTT, sFT = sM0, sM3
    P("s_and_b32 %s, %s, 1\ns_lshr_b32 %s, %s, 1" % (s(sTT), s(sW), s(sFT), s(sW)))
    vF1 = [[P.valloc(1) for _ in range(2)] for _ in range(2)]
    P("v_lshrrev_b32 %s, 1, %s\nv_xor_b32 %s, %s, %s\nv_lshlrev_b32 %s, 4, %s\nv_lshl_add_u32 %s, %s, 7, %s" % (v(t0), v(vI), v(t0), v(t0), v(vQ_), v(t0), v(t0), v(vF1[0][0]), v(vI), v(t0)))
    P("v_xor_b32 %s, 64, %s\nv_add_u32 %s, 0x10000, %s\nv_add_u32 %s, 0x10000, %s" % (v(vF1[1][0]), v(vF1[0][0]), v(vF1[0][1]), v(vF1[0][0]), v(vF1[1][1]), v(vF1[1][0])))
    vT = P.valloc(1); vH = P.valloc(1)
    P("s_lshl_b32 s3, %s, 5\nv_and_b32 %s, 31, v0\nv_add_u32 %s, s3, %s\nv_lshrrev_b32 %s, 5, v0" % (s(sTT), v(vT), v(vT), v(vT), v(vH)))
    vGX = [[P.valloc(1) for _ in range(2)] for _ in range(4)]
    P("v_bfe_u32 %s, %s, 1, 3\nv_xor_b32 %s, %s, %s\nv_lshlrev_b32 %s, 4, %s\nv_lshl_add_u32 %s, %s, 7, %s" % (v(t0), v(vT), v(t0), v(t0), v(vH), v(t0), v(t0), v(vGX[0][0]), v(vT), v(t0)))
    for k in range(1, 4): P("v_xor_b32 %s, %d, %s" % (v(vGX[k][0]), 32 * k, v(vGX[0][0])) if 32 * k <= 64 else "v_xor_b32 %s, 0x60, %s" % (v(vGX[k][0]), v(vGX[0][0])))
    for k in range(4): P("v_add_u32 %s, 0x10000, %s" % (v(vGX[k][1]), v(vGX[k][0])))
    vR = P.valloc(1); vRow = P.valloc(1); vIn = P.valloc(1)
    P("v_bfe_u32 %s, v0, 3, 1\nv_bfe_u32 %s, v0, 2, 2\nv_lshl_add_u32 %s, %s, 3, %s" % (v(vR), v(t0), v(vRow), v(vH), v(t0)))
    P("v_bfe_u32 %s, v0, 4, 1\nv_and_b32 %s, 1, v0\nv_lshl_add_u32 %s, %s, 1, %s\nv_lshlrev_b32 %s, 4, %s" % (v(t0), v(t1), v(t0), v(t0), v(t1), v(t0), v(t0)))
    P("v_bfe_u32 %s, v0, 1, 1\nv_lshl_add_u32 %s, %s, 3, %s" % (v(t1), v(vIn), v(t1), v(t0)))
    vWt = [P.valloc(1) for _ in range(3)]; vLn = [P.valloc(1) for _ in range(3)]
    P("v_xor_b32 %s, %s, %s\nv_lshl_add_u32 %s, %s, 6, %s\nv_lshl_add_u32 %s, %s, 7, %s" % (v(t0), s(sFT), v(vR), v(t0), v(t0), v(vIn), v(vWt[0]), v(vRow), v(t0)))
    P("s_lshl_b32 s3, %s, 10\nv_lshl_add_u32 %s, v0, 4, s3" % (s(sTT), v(vLn[0])))
    for k in (1, 2): P("v_add_u32 %s, %s, %s\nv_add_u32 %s, %s, %s" % (v(vWt[k]), hx(k << 16), v(vWt[0]), v(vLn[k]), hx(k << 16), v(vLn[0])))
    vOne = P.valloc(1); P("v_mov_b32 %s, 0x3f803f80" % v(vOne))
    P("s_waitcnt lgkmcnt(0)")
    srd_setup(P)
    stamp(P, "gen")

    def pipeline(nks, PD, bar, reads, mma, drain=False, hook=None):
        NB = PD + 1
        for i in range(-PD, nks):
            rk = i + PD
            rl = reads(rk, rk % NB) if rk < nks else []
            groups = mma(i, i % NB) if i >= 0 else []
            if i >= 0: P.wait_lg("k%d" % i)
            def do_bar():
                if rk < nks and bar(rk):
                    if drain and rk > 0: P.wait_lg("k%d" % (rk - 1))
                    P.barrier(bar(rk))
            if not groups:
                do_bar()
                for r_ in rl: r_()
            else:
                n = len(groups); per = [len(rl) // n + (1 if x < len(rl) % n else 0) for x in range(n)]
                for gi, (m_, post) in enumerate(groups):
                    P(m_)
                    if gi == 0: do_bar()
                    for _ in range(per[gi]): rl.pop(0)()
                    if post: P(post)
            if hook: hook(i)

    acc01 = P.valloc(16, 4); acc23 = P.valloc(16, 4); fb = [P.valloc(16, 4) for _ in range(3)]
    def f1_reads(k, b):
        it = "X%d" % (k >> 1); L = []
        for tl in range(4):
            r_, im = win(vF1[k & 1], lds.addr(it) + 2048 * tl)
            L.append(lambda r_=r_, im=im, tl=tl: P.ds("ds_read_b128 %s, %s offset:%d" % (v(fb[b] + 4 * tl, 4), v(r_), im), "k%d" % k, it))
        return L
    def f1_mma(k, b):
        acc = acc01 if k < 8 else acc23
        return [("v_mfma_f32_16x16x32_bf16 %s, %s, %s, %s" % (v(acc + 4 * tl, 4), v(fb[b] + 4 * tl, 4), v(vM + 4 * (k & 7), 4), "0" if k % 8 == 0 else v(acc + 4 * tl, 4)), None) for tl in range(4)]
    pipeline(16, 2, lambda k: "X%d" % (k >> 1) if k % 2 == 0 else None, f1_reads, f1_mma)
    stamp(P, "F1")
    for b in fb: P.vfree_(b, 16)
    P.vfree_(vM, 32)
    for x in vF1: P.vfree_(x[0]); P.vfree_(x[1])

    acc = P.valloc(16, 4); gb = [P.valloc(8, 4) for _ in range(5)]; vCs = P.valloc(3)
    vXSp = P.valloc(8, 4); vX1p = P.valloc(8, 4)
    def w_reads(L, k, dst, item):
        for a in range(2):
            r_, im = win(vWt, lds.addr(item) + 2048 * (k & 3) + 512 * a)
            L.append(lambda r_=r_, im=im, a=a: P.ds("ds_read_b64_tr_b16 %s, %s offset:%d" % (v(dst + 2 * a, 2), v(r_), im), "k%d" % k, item))
    def lin_read(L, k, dst, item):
        r_, im = win(vLn, lds.addr(item) + 2048 * (k & 3))
        L.append(lambda: P.ds("ds_read_b128 %s, %s offset:%d" % (v(dst, 4), v(r_), im), "k%d" % k, item))
    def dots(cs, b): return "\n".join("v_dot2c_f32_bf16 %s, %s, %s" % (v(cs), v(vOne), v(b + i)) for i in range(4))
    def g1_reads(k, b):
        L = []; it = "X%d" % (k >> 2)
        r_, im = win(vGX[k & 3], lds.addr(it))
        L.append(lambda: P.ds("ds_read_b128 %s, %s offset:%d" % (v(gb[b] + 4, 4), v(r_), im), "k%d" % k, it))
        w_reads(L, k, gb[b], "W1_%d" % (k >> 2)); return L
    def g_mma(init, cs):
        def f(k, b): return [("v_mfma_f32_32x32x16_bf16 %s, %s, %s, %s" % (v(acc, 16), v(gb[b], 4), v(gb[b] + 4, 4), "0" if (k == 0 and not init) else v(acc, 16)), dots(cs, gb[b]) if cs is not None else None)]
        return f
    vMu = P.valloc(1); vAl = P.valloc(1); vMode = P.valloc(1); vCB = P.valloc(4, 4); vCA = P.valloc(4, 4); vK = P.valloc(2); vIA = P.valloc(2)
    vA1 = P.valloc(16, 4); vMuU = P.valloc(2)
    def hilo_B(mu):
        P("v_cvt_pk_bf16_f32 %s, -%s, -%s\nv_and_b32 %s, 0xffff0000, %s\nv_sub_f32 %s, -%s, %s\nv_cvt_pk_bf16_f32 %s, %s, %s" % (v(vCB), v(mu), v(mu), v(t0), v(vCB), v(t0), v(mu), v(t0), v(vCB + 1), v(t0), v(t0)))
        P("v_mov_b32 %s, 0\nv_mov_b32 %s, 0\nv_mov_b32 %s, 0\nv_mov_b32 %s, 0" % (v(vCB + 2), v(vCB + 3), v(vCA + 2), v(vCA + 3)))
    def gelu_consts(al):
        P("v_mul_f32 %s, %s, %s\nv_mul_f32 %s, %s, %s\nv_mul_f32 %s, %s, %s\nv_mul_f32 %s, %s, %s\nv_rcp_f32 %s, %s" % (v(t0), v(al), v(al), v(vK + 1), fl(K0), v(al), v(t0), fl(0.044715), v(t0), v(vK), v(t0), v(vK + 1), v(vIA), v(al)))
    def corr(dst, src, cs):
        P("v_cvt_pk_bf16_f32 %s, %s, %s\nv_lshlrev_b32 %s, 16, %s\nv_sub_f32 %s, %s, %s\nv_cvt_pk_bf16_f32 %s, %s, %s\nv_mov_b32 %s, %s" % (v(t0), v(cs), v(cs), v(t0), v(t0), v(t0), v(cs), v(t0), v(vCA), v(cs), v(t0), v(vCA + 1), v(vCA)))
        P("v_mfma_f32_32x32x16_bf16 %s, %s, %s, %s" % (v(dst, 16), v(vCA, 4), v(vCB, 4), v(src, 16)))
    vGT = P.valloc(8, 4)
    def gelu(a, out):
        for hf in range(2):
            pr = [(a + 8 * hf + 2 * p_, vGT + 2 * p_) for p_ in range(4)]
            for x, t in pr: P("v_pk_mul_f32 %s, %s, %s" % (v(t, 2), v(x, 2), v(x, 2)))
            for x, t in pr: P("v_pk_fma_f32 %s, %s, %s, %s op_sel:[0,0,1] op_sel_hi:[1,0,1]" % (v(t, 2), v(t, 2), v(vK, 2), v(vK, 2)))
            for x, t in pr: P("v_pk_mul_f32 %s, %s, %s" % (v(t, 2), v(t, 2), v(x, 2)))
            for x, t in pr: P("v_exp_f32 %s, %s\nv_exp_f32 %s, %s" % (v(t), v(t), v(t + 1), v(t + 1)))
            for x, t in pr: P("v_pk_fma_f32 %s, %s, %s, %s op_sel_hi:[1,0,0]" % (v(t, 2), v(t, 2), v(vIA, 2), v(vIA, 2)))
            for x, t in pr: P("v_rcp_f32 %s, %s\nv_rcp_f32 %s, %s" % (v(t), v(t), v(t + 1), v(t + 1)))
            for x, t in pr: P("v_pk_mul_f32 %s, %s, %s" % (v(t, 2), v(t, 2), v(x, 2)))
            for p_, (x, t) in enumerate(pr): P("v_cvt_pk_bf16_f32 %s, %s, %s" % (v(out + 4 * hf + p_), v(t), v(t + 1)))
    def two_mode(texts, tag):
        lf, lj = lab("fast"), lab("join")
        P("s_cmp_lg_u32 %s, 0\ns_cbranch_scc1 %s" % (s(sMODE), lf))
        P.begin_opt()
        for t in texts: P(t + " sc1")
        P("s_branch %s" % lj); P.end_opt(); P("%s:" % lf); P.begin_opt()
        for t in texts: P.vmem(t, tag)
        P.end_opt(); P("%s:" % lj)
    vPh = P.valloc(1); vFo = P.valloc(1)
    def flag(phase):
        P("v_mov_b32 %s, %d\ns_lshl_b32 s3, %s, 2\ns_add_u32 s3, s3, %s\ns_lshl_b32 s3, s3, 2\ns_add_u32 s3, s3, %s\ns_mov_b64 exec, 1" % (v(vPh), phase, s(sC), s(sW), s(sFG)))
        two_mode(["buffer_store_dword %s, off, %s, s3" % (v(vPh), s(SWS, 4))], "flag")
        P("s_mov_b64 exec, -1")
    def poll(phase):
        sk = lab("nopoll")
        P("s_cmp_lg_u32 %s, 0\ns_cbranch_scc1 %s" % (s(sW), sk))
        P.begin_opt()
        spin(P, "buffer_load_dword %s, %s, %s, %s offen sc1" % (v(vPh), v(vFo), s(SWS, 4), s(sFG)), "v_cmp_le_u32 vcc, %d, %s" % (phase, v(vPh)))
        P.end_opt(); P("%s:" % sk)
    P("v_mov_b32 %s, 0\nv_and_b32 %s, 31, v0\nv_lshlrev_b32 %s, 2, %s" % (v(vCs), v(vFo), v(vFo), v(vFo)))
    vLn16 = P.valloc(1); P("v_lshlrev_b32 %s, 4, v0" % v(vLn16))
    def g1_hook(i):
        if i == 0:
            P("s_lshl_b32 s3, %s, 6\nv_xor_b32 %s, s3, %s\nv_xor_b32 %s, 32, %s" % (s(sFT), v(t0), v(vGX[0][0]), v(t1), v(t0)))
            P.ds("ds_read_b128 %s, %s offset:%d" % (v(vXSp, 4), v(t0), lds.addr("XS")), "k4", "XS")
            P.ds("ds_read_b128 %s, %s offset:%d" % (v(vXSp + 4, 4), v(t1), lds.addr("XS")), "k4", "XS")
        if i == 20:
            P("v_lshlrev_b32 %s, 2, %s\nv_add_u32 %s, %s, %s" % (v(t2), v(vT), v(t2), hx(LB), v(t2)))
            P.ds("ds_read_b32 %s, %s" % (v(vMu), v(t2)), "k24", "STATS")
            P.ds("ds_read_b32 %s, %s offset:256" % (v(vAl), v(t2)), "k24", "STATS")
        if i == 22:
            P.ds("ds_read_b32 %s, %s offset:%d" % (v(vMuU), v(t2), 768 + 8), "k26", "STATS")
            P.ds("ds_read_b32 %s, %s offset:%d" % (v(vMuU + 1), v(t2), 1088 + 8), "k26", "STATS")
        if i == 24:
            P("v_mov_b32 %s, %s" % (v(t1), hx(L_MODE)))
            P.ds("ds_read_b32 %s, %s" % (v(vMode), v(t1)), "k28", "MODE")
            hilo_B(vMu)
        if i == 26: gelu_consts(vAl)
        if i == 28:
            P("v_readfirstlane_b32 %s, %s" % (s(sMODE), v(vMode)))
            P("v_lshlrev_b32 %s, 4, %s\nv_add_u32 %s, %s, %s" % (v(t2), v(vQ_), v(t2), hx(L_A1W), v(t2)))
            for tl in range(4): P.ds("ds_read_b128 %s, %s offset:%d" % (v(vA1 + 4 * tl, 4), v(t2), 64 * tl), "a1", "STATS")
    pipeline(32, 4, lambda k: "W%d" % (k >> 2) if k % 4 == 0 else None, g1_reads, g_mma(False, vCs), hook=g1_hook)
    stamp(P, "G1")
    for x in vGX: P.vfree_(x[0]); P.vfree_(x[1])
    vO = P.valloc(8, 4)
    corr(acc, acc, vCs)
    gelu(acc, vO)
    le = lab("edge")
    P("s_add_u32 s3, %s, 1\ns_and_b32 s3, s3, 30\ns_cbranch_scc1 %s" % (s(sG), le))
    P.begin_opt()
    P("s_lshl_b32 s3, %s, 6\ns_sub_u32 s3, s3, %s\nv_add_u32 %s, s3, %s\nv_cmp_gt_u32 vcc, 0x800, %s" % (s(sG), s(sSIG), v(t0), v(vT), v(t0)))
    for i in range(8): P("v_cndmask_b32 %s, 0, %s, vcc" % (v(vO + i), v(vO + i)))
    P.end_opt(); P("%s:" % le)
    sHO = sE
    P("s_lshl_b32 s3, %s, 1\ns_add_u32 s3, s3, %s\ns_lshl_b32 s3, s3, 2\ns_add_u32 s3, s3, %s\ns_lshl_b32 s3, s3, 10\ns_add_u32 %s, s3, %s" % (s(sC), s(sFT), s(sTT), s(sHO), s(sGH)))
    two_mode(["buffer_store_dwordx4 %s, %s, %s, %s offen offset:%d" % (v(vO + 4 * p_, 4), v(vLn16), s(SWS, 4), s(sHO), 2048 * p_) for p_ in range(2)], "hst")
    stamp(P, "hst")
    P.wait_lg("a1")
    for k in range(0, 16, 2): P("v_pk_fma_f32 %s, %s, %s, %s op_sel_hi:[1,0,1]" % (v(acc01 + k, 2), v(acc23 + k, 2), v(vSg, 2), v(acc01 + k, 2)))
    for k in range(0, 16, 2): P("v_pk_mul_f32 %s, %s, %s" % (v(acc01 + k, 2), v(acc01 + k, 2), v(vA1 + k, 2)))
    for k in range(8): P("v_cvt_pk_bf16_f32 %s, %s, %s" % (v(acc23 + k), v(acc01 + 2 * k), v(acc01 + 2 * k + 1)))
    P("v_lshrrev_b32 %s, 1, %s\nv_and_b32 %s, 7, v0\nv_xor_b32 %s, %s, %s\nv_lshlrev_b32 %s, 4, %s" % (v(t0), v(vQ_), v(t1), v(t0), v(t0), v(t1), v(t0), v(t0)))
    P("v_and_b32 %s, 1, %s\nv_lshl_add_u32 %s, %s, 3, %s\nv_lshl_add_u32 %s, %s, 7, %s" % (v(t2), v(vQ_), v(t0), v(t2), v(t0), v(t0), v(vI), v(t0)))
    P("s_lshl_b32 s3, %s, 11\nv_add_u32 %s, s3, %s" % (s(sW), v(t0), v(t0)))
    P("v_xor_b32 %s, 32, %s\nv_xor_b32 %s, 64, %s\nv_xor_b32 %s, 0x60, %s" % (v(t2), v(t0), v(t3), v(t0), v(t4), v(t0)))
    for tl, r_ in enumerate((t0, t2, t3, t4)): P.ds("ds_write_b64 %s, %s offset:%d" % (v(r_), v(acc23 + 2 * tl, 2), lds.addr("TMP")), "tw", "TMP", True)
    P("v_lshrrev_b32 %s, 3, v0\nv_xor_b32 %s, %s, %s\nv_lshlrev_b32 %s, 4, %s\nv_lshl_add_u32 %s, %s, 7, %s\nv_add_u32 %s, s3, %s" % (v(t5), v(t0), v(t1), v(t5), v(t0), v(t0), v(t0), v(t5), v(t0), v(t0), v(t0)))
    vAp = acc01
    for hf in range(2): P.ds("ds_read_b128 %s, %s offset:%d" % (v(vAp + 4 * hf, 4), v(t0), lds.addr("TMP") + 1024 * hf), "tr", "TMP")
    vAo = P.valloc(1)
    P("v_lshlrev_b32 %s, 4, %s\nv_lshl_add_u32 %s, %s, 13, %s" % (v(t1), v(t1), v(vAo), v(t5), v(t1)))
    P.wait_vm("hst")
    flag(1)
    stamp(P, "flag1")
    P("v_mul_f32 %s, %s, %s\nv_sub_f32 %s, 0, %s" % (v(vMuU), v(vMuU), v(vMuU + 1), v(vMuU), v(vMuU)))
    def unpack(dst, src):
        for i in range(8): P("v_lshlrev_b32 %s, 16, %s\nv_and_b32 %s, 0xffff0000, %s" % (v(dst + 2 * i), v(src + i), v(dst + 2 * i + 1), v(src + i)))
    unpack(acc, vXSp)
    for k in range(0, 16, 2): P("v_pk_fma_f32 %s, %s, %s, %s op_sel:[0,1,0] op_sel_hi:[1,1,0]" % (v(acc + k, 2), v(acc + k, 2), v(vMuU, 2), v(vMuU, 2)))
    P.wait_lg("tr")
    poll(1)
    stamp(P, "poll1")
    P.barrier("P1")
    P("s_lshl_b32 s3, %s, 2\ns_add_u32 s3, s3, %s\ns_lshl_b32 s3, s3, 16\ns_lshl_b32 %s, %s, 7\ns_add_u32 s3, s3, %s\ns_add_u32 s3, s3, %s\ns_add_u32 %s, s3, 0x1000" % (s(sC), s(sW), s(sT0), s(sG), s(sT0), hx(WS_AT), s(sT0)))
    P.vmem("buffer_store_dwordx4 %s, %s, %s, s3 offen sc1" % (v(vAp, 4), v(vAo), s(SWS, 4)), "ast")
    P.vmem("buffer_store_dwordx4 %s, %s, %s, %s offen sc1" % (v(vAp + 4, 4), v(vAo), s(SWS, 4), s(sT0)), "ast")
    def g2_reads(k, b):
        L = []; lin_read(L, k, gb[b] + 4, "H%d" % (k >> 2)); w_reads(L, k, gb[b], "W2_%d" % (k >> 2)); return L
    def g2_hook(i):
        if i == 22:
            P.wait_vm("ast")
            P("v_mov_b32 %s, 1\ns_lshl_b32 s3, %s, 2\ns_add_u32 s3, s3, %s\ns_lshl_b32 s3, s3, 5\ns_add_u32 s3, s3, %s\ns_lshl_b32 s3, s3, 2\ns_add_u32 s3, s3, %s\ns_mov_b64 exec, 1" % (v(vPh), s(sC), s(sW), s(sG), hx(WS_F1)))
            P.vmem("buffer_store_dword %s, off, %s, s3 sc1" % (v(vPh), s(SWS, 4)), "afl")
            P("s_mov_b64 exec, -1")
    pipeline(32, 4, lambda k: "H%d" % (k >> 2) if k % 4 == 0 else None, g2_reads, g_mma(True, None), hook=g2_hook)
    stamp(P, "G2")
    P.vfree_(acc01, 16); P.vfree_(acc23, 16); P.vfree_(vA1, 16); P.vfree_(vAo)
    P("s_add_u32 %s, %s, %s" % (s(sT0), s(sHO), hx(WS_X1)))
    P("v_lshlrev_b32 %s, 4, %s\nv_lshl_add_u32 %s, %s, 2, %s\nv_mov_b32 %s, 0\nv_mov_b32 %s, 0" % (v(t2), v(vT), v(t3), v(vH), v(t2), v(t0), v(t1)))
    P("s_lshl_b32 s3, %s, 13\ns_add_u32 %s, s3, %s\ns_lshl_b32 s3, %s, 7\ns_add_u32 s3, s3, %s\ns_lshl_b32 s3, s3, 3\ns_add_u32 %s, s3, %s" % (s(sG), s(sT1), hx(WS_ST), s(sC), s(sFT), s(sT2), s(sT1)))
    for k in range(8): P("v_cvt_pk_bf16_f32 %s, %s, %s" % (v(vX1p + k), v(acc + 2 * k), v(acc + 2 * k + 1)))
    two_mode(["buffer_store_dwordx4 %s, %s, %s, %s offen offset:%d" % (v(vX1p + 4 * p_, 4), v(vLn16), s(SWS, 4), s(sT0), 2048 * p_) for p_ in range(2)], "x1st")
    for k in range(8): P("v_dot2c_f32_bf16 %s, %s, %s\nv_dot2c_f32_bf16 %s, %s, %s" % (v(t0), v(vOne), v(vX1p + k), v(t1), v(vX1p + k), v(vX1p + k)))
    fold32(P, t0, t1)
    two_mode(["buffer_store_dword %s, %s, %s, %s offen" % (v(t0), v(t3), s(SWS, 4), s(sT2))], "x1st")
    vW3 = [[P.valloc(1) for _ in range(2)] for _ in range(2)]
    P("s_mul_i32 s3, %s, 3\nv_mul_u32_u24 %s, 0x180, %s\nv_add_u32 %s, %s, %s" % (s(sFT), v(t4), v(vRow), v(t4), v(t4), v(vIn)))
    P("v_xor_b32 %s, s3, %s\nv_lshl_add_u32 %s, %s, 6, %s" % (v(t5), v(vR), v(vW3[0][0]), v(t5), v(t4)))
    P("s_add_u32 s3, s3, 1\nv_xor_b32 %s, s3, %s\nv_lshl_add_u32 %s, %s, 6, %s" % (v(t5), v(vR), v(vW3[1][0]), v(t5), v(t4)))
    for u in range(2): P("v_add_u32 %s, 0x10000, %s" % (v(vW3[u][1]), v(vW3[u][0])))
    P("v_mov_b32 %s, 0\nv_mov_b32 %s, 0\nv_mov_b32 %s, 0" % (v(vCs), v(vCs + 1), v(vCs + 2)))
    P("v_lshl_add_u32 %s, %s, 12, %s" % (v(t3 if False else t4), v(vH), v(t2)))
    P.wait_vm("x1st")
    flag(2)
    stamp(P, "flag2")
    poll(2)
    stamp(P, "poll2")
    P.barrier("P2")
    vSt = P.valloc(16, 4)
    for k in range(4): P.vmem("buffer_load_dwordx4 %s, %s, %s, %s offen offset:%d sc1" % (v(vSt + 4 * k, 4), v(t4), s(SWS, 4), s(sT1), 1024 * k), "stl")
    for b in gb: P.vfree_(b, 8)
    P.vfree_(acc, 16)
    acc3 = P.valloc(48, 4); g3b = [P.valloc(16, 4) for _ in range(3)]
    def g3_reads(k, b):
        L = []; lin_read(L, k, g3b[b] + 12, "X1_%d" % (k >> 2)); it = "W3_%d" % (k >> 1)
        for u in range(3):
            for a in range(2):
                r_, im = win(vW3[u & 1], lds.addr(it) + 6144 * (k & 1) + 1536 * a + 128 * (u >> 1))
                L.append(lambda r_=r_, im=im, a=a, u=u: P.ds("ds_read_b64_tr_b16 %s, %s offset:%d" % (v(g3b[b] + 4 * u + 2 * a, 2), v(r_), im), "k%d" % k, it))
        return L
    def g3_mma(k, b):
        return [("v_mfma_f32_32x32x16_bf16 %s, %s, %s, %s" % (v(acc3 + 16 * u, 16), v(g3b[b] + 4 * u, 4), v(g3b[b] + 12, 4), "0" if k == 0 else v(acc3 + 16 * u, 16)), dots(vCs + u, g3b[b] + 4 * u)) for u in range(3)]
    def g3_hook(i):
        if i == 12:
            P.wait_vm("stl")
            for k in (8, 4, 2):
                for x in range(0, k, 2): P("v_pk_add_f32 %s, %s, %s" % (v(vSt + x, 2), v(vSt + x, 2), v(vSt + k + x, 2)))
        if i == 14:
            fold32(P, vSt, vSt + 1); spread(P, vSt, vSt + 1)
            stats_math(P, vSt, vSt + 1, vMu, vAl, None, t0)
        if i == 16: hilo_B(vMu)
        if i == 18: gelu_consts(vAl)
    pipeline(32, 2, lambda k: "G3_%d" % (k >> 2) if k % 4 == 0 else None, g3_reads, g3_mma, drain=True, hook=g3_hook)
    P.barrier("G3end")
    stamp(P, "G3")
    P.vfree_(vSt, 16)
    for b in g3b: P.vfree_(b, 16)
    P("s_mul_i32 %s, %s, 5\ns_min_u32 s3, %s, 2\ns_add_u32 %s, %s, s3\ns_mul_i32 s3, %s, 3\ns_add_u32 %s, %s, s3" % (s(sT0), s(sC), s(sC), s(sT0), s(sT0), s(sFT), s(sT0), s(sT0)))
    P("s_lshl_b32 %s, %s, 2\ns_add_u32 %s, %s, %s\ns_lshl_b32 %s, %s, 10\ns_add_u32 %s, %s, %s" % (s(sT0), s(sT0), s(sT0), s(sT0), s(sTT), s(sT0), s(sT0), s(sT0), s(sT0), s(sGU)))
    vO2 = P.valloc(8, 4)
    for u in range(3): corr(acc3 + 16 * u, acc3 + 16 * u, vCs + u)
    lskip = lab("skip3")
    for u in range(3):
        if u == 2:
            P("s_sub_u32 s3, %s, 2\ns_cmp_lt_u32 s3, 5\ns_cselect_b32 s3, %s, 0\ns_cmp_lg_u32 s3, 0\ns_cbranch_scc1 %s" % (s(sC), s(sFT), lskip))
        o = vO if u != 1 else vO2
        gelu(acc3 + 16 * u, o)
        if u: P("s_add_u32 %s, %s, 0x1000" % (s(sT0), s(sT0)))
        two_mode(["buffer_store_dwordx4 %s, %s, %s, %s offen offset:%d" % (v(o + 4 * p_, 4), v(vLn16), s(SWS, 4), s(sT0), 2048 * p_) for p_ in range(2)], "ust")
    P("%s:" % lskip)
    stamp(P, "ust")
    P.vfree_(acc3, 48); P.vfree_(vO2, 8)
    acc = P.valloc(16, 4); gb = [P.valloc(8, 4) for _ in range(5)]; vXf = P.valloc(16, 4); vYf = P.valloc(16, 4); vYp = P.valloc(8, 4)
    P("s_nop 1")
    unpack(acc, vX1p); unpack(vXf, vXSp)
    vYa = P.valloc(1); vOo = P.valloc(1)
    P("v_bfe_u32 %s, v0, 4, 1\nv_bfe_u32 %s, v0, 1, 1\nv_lshl_add_u32 %s, %s, 1, %s\nv_lshlrev_b32 %s, 4, %s" % (v(t0), v(t1), v(t0), v(t0), v(t1), v(t0), v(t0)))
    P("v_and_b32 %s, 1, v0\nv_lshl_add_u32 %s, %s, 3, %s\nv_xor_b32 %s, %s, %s\nv_lshl_add_u32 %s, %s, 6, %s" % (v(t1), v(t0), v(t1), v(t0), v(t1), s(sTT), v(vR), v(t0), v(t1), v(t0)))
    P("s_lshl_b32 s3, %s, 12\ns_add_u32 s3, s3, %s\nv_lshl_add_u32 %s, %s, 7, %s\nv_add_u32 %s, s3, %s" % (s(sFT), hx(lds.addr("YT")), v(t0), v(vRow), v(t0), v(vYa), v(t0)))
    P("s_lshl_b32 s3, %s, 6\nv_lshlrev_b32 %s, 4, %s\nv_lshl_add_u32 %s, %s, 10, %s\nv_add_u32 %s, s3, %s" % (s(sFT), v(t0), v(vH), v(t0), v(vT), v(t0), v(vOo), v(t0)))
    P.wait_vm_all()
    flag(3)
    stamp(P, "flag3")
    poll(3)
    stamp(P, "poll3")
    P.barrier("P3")
    def g4_reads(k, b):
        L = []; lin_read(L, k, gb[b] + 4, "U%d" % (k >> 2)); w_reads(L, k, gb[b], "W4_%d" % (k >> 2)); return L
    def g4_hook(i):
        if i == 77:
            for p_ in range(2):
                for a in range(2): P.ds("ds_read_b64_tr_b16 %s, %s offset:%d" % (v(vYp + 4 * p_ + 2 * a, 2), v(vYa), 2048 * p_ + 512 * a), "k81", "YT")
        if i >= 82:
            x = 2 * (i - 82)
            for y in (x, x + 1): P("v_lshlrev_b32 %s, 16, %s\nv_and_b32 %s, 0xffff0000, %s" % (v(vYf + 2 * y), v(vYp + y), v(vYf + 2 * y + 1), v(vYp + y)))
    pipeline(86, 4, lambda k: "G4_%d" % (k >> 2) if k % 4 == 0 else None, g4_reads, g_mma(True, None), hook=g4_hook)
    stamp(P, "G4")
    P("s_mov_b32 %s, %s\ns_lshl_b32 s3, %s, 7\ns_add_u32 %s, s3, %s" % (s(sK), fl(-math.log2(math.e)), s(sC), s(sT0), s(sGH)))
    for hf in range(2):
        pr = [(acc + 8 * hf + 2 * p_, vGT + 2 * p_, vYf + 8 * hf + 2 * p_, vXf + 8 * hf + 2 * p_) for p_ in range(4)]
        for x, t, y, xx in pr: P("v_pk_mul_f32 %s, %s, %s op_sel_hi:[1,0]" % (v(t, 2), v(x, 2), s(sK, 2)))
        for x, t, y, xx in pr: P("v_exp_f32 %s, %s\nv_exp_f32 %s, %s" % (v(t), v(t), v(t + 1), v(t + 1)))
        for x, t, y, xx in pr: P("v_pk_mul_f32 %s, %s, %s" % (v(y, 2), v(y, 2), v(x, 2)))
        for x, t, y, xx in pr: P("v_pk_add_f32 %s, %s, 1.0 op_sel_hi:[1,0]" % (v(t, 2), v(t, 2)))
        for x, t, y, xx in pr: P("v_rcp_f32 %s, %s\nv_rcp_f32 %s, %s" % (v(t), v(t), v(t + 1), v(t + 1)))
        for x, t, y, xx in pr: P("v_pk_fma_f32 %s, %s, %s, %s" % (v(t, 2), v(t, 2), v(y, 2), v(xx, 2)))
        for p_, (x, t, y, xx) in enumerate(pr): P("v_cvt_pk_bf16_f32 %s, %s, %s" % (v(vO + 4 * hf + p_), v(t), v(t + 1)))
        P.vmem("buffer_store_dwordx4 %s, %s, %s, %s offen offset:%d" % (v(vO + 4 * hf, 4), v(vOo), s(SOUT, 4), s(sT0), 32 * hf), "out")
    stamp(P, "end")
    dump_stamps(P, 1)
    P("LEND:\ns_endpgm")

    assert A.bars == B.bars, (A.bars, B.bars)
    errs = lds.check()
    for e in errs: print("LDS:", e, file=sys.stderr)
    assert not errs
    p0, n0 = pad_hazards([], P0.ins)
    b, nb = pad_hazards(p0, B.ins)
    a, na = pad_hazards(p0, A.ins)
    print("vgprs A %d B %d ; nops pro %d B %d A %d ; barriers %d" % (A.vmax, B.vmax, n0, nb, na, len(A.bars)), file=sys.stderr)
    body = "\n".join(i.text for i in p0 + b + a)
    head = open("recurrent_scan__spectral_fnet__mixer_s_mlp__prompt.s.ref").read().split("\n")
    cm = [l for l in head if l.startswith(";") and "@launch" not in l and "Override" not in l and "grid=ceil" not in l]
    txt = "\n".join(cm) + "\n; @launch grid=(256,1,1) block=(512,1,1) lds=163840\n"
    txt += '.amdgcn_target "amdgcn-amd-amdhsa--gfx950"\n.text\n.globl %s\n.p2align 8\n.type %s,@function\n%s:\n' % (KNAME, KNAME, KNAME)
    txt += body + "\nLCODE_END:\n"
    txt += '.section .rodata,"a"\n.p2align 6\n.amdhsa_kernel %s\n  .amdhsa_next_free_vgpr 256\n  .amdhsa_next_free_sgpr 102\n  .amdhsa_accum_offset 256\n  .amdhsa_group_segment_fixed_size 0\n  .amdhsa_kernarg_size 104\n  .amdhsa_user_sgpr_count 2\n  .amdhsa_user_sgpr_kernarg_segment_ptr 1\n  .amdhsa_system_sgpr_workgroup_id_x 1\n.end_amdhsa_kernel\n' % KNAME
    return txt, stnames

if __name__ == "__main__":
    import argparse, json
    ap = argparse.ArgumentParser()
    ap.add_argument("-o", default="k.s"); ap.add_argument("--stamps", action="store_true"); ap.add_argument("--slow", action="store_true")
    ap.add_argument("--set", action="append", default=[])
    a = ap.parse_args()
    opt.stamps = a.stamps; opt.force_slow = a.slow
    for kv in a.set:
        k_, v_ = kv.split("="); setattr(opt, k_, int(v_))
    txt, st = build()
    open(a.o, "w").write(txt)
    json.dump(st, open(a.o + ".stamps.json", "w"))
```
